```python
import torch

def _softmax(x, axis=-1):
    return torch.softmax(x, dim=axis)
def _gelu(x):
    return torch.nn.functional.gelu(x, approximate="tanh")
def _silu(x):
    return torch.nn.functional.silu(x)
def _sigmoid(x):
    return torch.sigmoid(x)
def _layernorm(x, axis=-1, eps=1e-5):
    m = x.mean(dim=axis, keepdim=True)
    v = x.var(dim=axis, keepdim=True, unbiased=False)
    return (x - m) / torch.sqrt(v + eps)
def _scatter_add(tgt, idx, src, axis=0):
    return tgt.clone().index_add_(axis, idx, src)
def _segment_sum(src, seg, n):
    out = torch.zeros((n,) + src.shape[1:], dtype=src.dtype)
    return out.index_add_(0, seg, src)
def _pad(x, pw):
    flat = tuple(v for pair in reversed(pw) for v in pair)
    return torch.nn.functional.pad(x, flat)

kernel_name = 'gated_mix__ssm_conv_s4d__linear_attn_block__prompt'

def setup_inputs():

    _w = (lambda a: (lambda t: t.to(torch.bfloat16) if t.is_floating_point() else t)(torch.as_tensor(a)))
    def _A_setup():
        Bsz, L, D, N = 1, 2048, 1024, 128
        return {
            "u": _w((lambda *s: torch.randn(*s, dtype=torch.bfloat16) * 0.05)(Bsz, L, D)),
            "log_A_real": _w((lambda *s: torch.randn(*s, dtype=torch.bfloat16) * 3.2)(D, N) * 0.5),
            "A_imag": _w((lambda *s: torch.randn(*s, dtype=torch.bfloat16) * 0.05)(D, N) * 3.14),
            "C_real": _w((lambda *s: torch.randn(*s, dtype=torch.bfloat16) * 0.8)(D, N) / N ** 0.5),
            "C_imag": _w((lambda *s: torch.randn(*s, dtype=torch.bfloat16) * 0.8)(D, N) / N ** 0.5),
            "log_dt": _w((lambda *s: torch.randn(*s, dtype=torch.bfloat16) * 0.05)(D) * 0.5 - 4.0),
            "D_skip": _w((lambda *s: torch.randn(*s, dtype=torch.bfloat16) * 0.1)(D)),
        }
    _A_in = _A_setup()

    def _B_setup():
        B, S, D = 1, 2048, 1024
        return {
            "x": _w((lambda *s: torch.randn(*s, dtype=torch.bfloat16) * 0.05)(B, S, D)),
            "wqkv": _w((lambda *s: torch.randn(*s, dtype=torch.bfloat16) * 0.8)(D, 3 * D)),
            "wo": _w((lambda *s: torch.randn(*s, dtype=torch.bfloat16) * 0.05)(D, D)),
        }
    _B_in = _B_setup()

    return {
        "A_u": _A_in["u"],
        "A_log_A_real": _A_in["log_A_real"],
        "A_A_imag": _A_in["A_imag"],
        "A_C_real": _A_in["C_real"],
        "A_C_imag": _A_in["C_imag"],
        "A_log_dt": _A_in["log_dt"],
        "A_D_skip": _A_in["D_skip"],
        "B_x": _B_in["x"],
        "B_wqkv": _B_in["wqkv"],
        "B_wo": _B_in["wo"],
        "gate_w": _w((lambda *s: torch.randn(*s, dtype=torch.bfloat16) * 0.05)(1024) * 16.0),
    }

def reference(A_u, A_log_A_real, A_A_imag, A_C_real, A_C_imag, A_log_dt, A_D_skip, B_x, B_wqkv, B_wo, gate_w):
    def _A_ref(u, log_A_real, A_imag, C_real, C_imag, log_dt, D_skip):
        L = u.shape[1]
        dt = torch.exp(log_dt)
        A = -torch.exp(log_A_real) + 1j * A_imag
        C = (C_real + 1j * C_imag) * dt[:, None]
        pos = (lambda x, dt: x.to(dt))(torch.arange(L), log_dt.dtype)
        P = torch.exp((A * dt[:, None])[:, :, None] * pos[None, None, :])
        K = 2.0 * torch.einsum("dn,dnl->dl", C, P).real
        L2 = 2 * L
        u_t = (lambda x, *d: x.permute(*d))(u, 0, 2, 1)
        Kf = (lambda x, *a, **k: torch.fft.rfft(x.float(), *a, **k))(K, L2)
        Uf = (lambda x, *a, **k: torch.fft.rfft(x.float(), *a, **k))(u_t, L2)
        y = (lambda x, *a, **k: torch.fft.irfft(x, *a, **k).to(torch.bfloat16))(Uf * Kf[None, :, :], L2)[:, :, :L]
        y = (lambda x, *d: x.permute(*d))(y, 0, 2, 1)
        return y + u * D_skip[None, None, :]

    def _B_ref(x, wqkv, wo):
        B, S, D = x.shape
        H = 32; Dh = D // H
        qkv = (lambda x, *d: x.permute(*d))((x @ wqkv).reshape(B, S, 3, H, Dh), 2, 0, 3, 1, 4)
        q, k, v = qkv[0], qkv[1], qkv[2]
        phi = lambda t: torch.where(t > 0, t + 1, torch.exp(t)) + 1e-6
        pq, pk = phi(q), phi(k)
        kv = torch.einsum("bhsd,bhse->bhde", pk, v)
        z = torch.einsum("bhsd->bhd", pk)
        num = torch.einsum("bhqd,bhde->bhqe", pq, kv)
        den = torch.einsum("bhqd,bhd->bhq", pq, z)[..., None] + 1e-6
        o = num / den
        return (lambda x, *d: x.permute(*d))(o, 0, 2, 1, 3).reshape(B, S, D) @ wo

    x = A_u
    g = _sigmoid((x * gate_w).sum(-1, keepdims=True))
    a = _A_ref(x, A_log_A_real, A_A_imag, A_C_real, A_C_imag, A_log_dt, A_D_skip)
    b = _B_ref(x, B_wqkv, B_wo)
    return g * a + (1 - g) * b
```

```python
class R:
    def __init__(self, kind, idx, n=1):
        self.kind, self.idx, self.n = kind, idx, n
    def __getitem__(self, i):
        if isinstance(i, slice):
            a = i.start or 0
            b = i.stop if i.stop is not None else self.n
            assert 0 <= a < b <= self.n, (a, b, self.n)
            return R(self.kind, self.idx + a, b - a)
        assert 0 <= i < self.n, (i, self.n)
        return R(self.kind, self.idx + i, 1)
    def sub(self, a, n):
        assert 0 <= a and a + n <= self.n, (a, n, self.n)
        return R(self.kind, self.idx + a, n)
    def __str__(self):
        if self.n == 1:
            return f"{self.kind}{self.idx}"
        return f"{self.kind}[{self.idx}:{self.idx + self.n - 1}]"
    __repr__ = __str__
    def __format__(self, spec):
        return str(self)

def v(i, n=1): return R('v', i, n)
def s(i, n=1): return R('s', i, n)
def a(i, n=1): return R('a', i, n)

class Alloc:
    def __init__(self, kind, start, limit):
        self.kind, self.next, self.limit, self.hi = kind, start, limit, start
    def __call__(self, n=1, align=None):
        if align is None:
            if self.kind == 's':
                align = 1 if n == 1 else (2 if n == 2 else 4)
            else:
                align = 1 if n == 1 else 2
        i = (self.next + align - 1) // align * align
        self.next = i + n
        assert self.next <= self.limit, f"out of {self.kind} regs: {self.next} > {self.limit}"
        self.hi = max(self.hi, self.next)
        return R(self.kind, i, n)
    def mark(self): return self.next
    def reset(self, m): self.next = m

class Asm:
    def __init__(self):
        self.lines = []
        self.uid = 0
    def __call__(self, txt):
        for l in txt.strip('\n').split('\n'):
            l = l.strip()
            if not l: continue
            if l.endswith(':') or l.startswith('.'):
                self.lines.append(l)
            else:
                self.lines.append('    ' + l)
    def c(self, txt): self.lines.append('    ; ' + txt)
    def label(self, base):
        self.uid += 1
        return f"L_{base}_{self.uid}"
    def text(self): return '\n'.join(self.lines) + '\n'

def kernel_header(A, name):
    A(f".globl {name}\n.p2align 8\n.type {name},@function\n{name}:")

def kernel_desc(name, vgprs, agprs, sgprs):
    acc_off = (vgprs + 3) // 4 * 4
    if acc_off == 0: acc_off = 4
    nfv = acc_off + agprs if agprs else vgprs
    assert nfv <= 512 and acc_off <= 256
    return f""".p2align 6
.amdhsa_kernel {name}
  .amdhsa_next_free_vgpr {nfv}
  .amdhsa_next_free_sgpr {sgprs}
  .amdhsa_accum_offset {acc_off}
  .amdhsa_group_segment_fixed_size 0
  .amdhsa_kernarg_size 112
  .amdhsa_user_sgpr_count 2
  .amdhsa_user_sgpr_kernarg_segment_ptr 1
  .amdhsa_system_sgpr_workgroup_id_x 1
  .amdhsa_float_denorm_mode_32 3
  .amdhsa_float_denorm_mode_16_64 3
.end_amdhsa_kernel
"""

def interleave(main, fill, start=0, every=None):
    out = []
    n, m = len(main), len(fill)
    j = 0
    for i, x in enumerate(main):
        out.append(x)
        if i >= start:
            want = ((i - start + 1) * m + (n - start) - 1) // (n - start) if every is None else min(m, (i - start + 1) * every)
            while j < want:
                out.append(fill[j]); j += 1
    out.extend(fill[j:])
    return out
```

```python
import re
from asm import R

REG_RE = re.compile(r'(?<![\w:])([vsa])\[(\d+):(\d+)\]|(?<![\w:\[])([vsa])(\d+)(?![\w\]])|\b(vcc|exec|m0|scc)\b')
TRANS = ('v_exp_f32', 'v_log_f32', 'v_rcp_f32', 'v_rsq_f32', 'v_sqrt_f32', 'v_sin_f32', 'v_cos_f32')

def regs_of(txt):
    out = []
    for m in REG_RE.finditer(txt):
        if m.group(1): out.append([(m.group(1), i) for i in range(int(m.group(2)), int(m.group(3)) + 1)])
        elif m.group(4): out.append([(m.group(4), int(m.group(5)))])
        else: out.append([(m.group(6), 0)])
    return out

class I:
    __slots__ = ('txt', 'op', 'kind', 'defs', 'uses', 'tag', 'vm', 'lg', 'nops', 'passes', 'srcc', 'ab', 'wide', 'dpp', 'arg')
    def __init__(self, txt, tag=None):
        self.txt, self.tag = txt, tag
        self.vm = self.lg = None; self.nops = 0
        self.defs, self.uses = set(), set()
        self.passes = 0; self.srcc = ();  self.ab = set(); self.wide = set(); self.dpp = False; self.arg = None
        t = txt.split(';')[0].strip()
        if t.endswith(':'): self.op = self.kind = 'label'; return
        if t.startswith('@'):
            p = t.split(); self.op = p[0]; self.kind = 'pseudo'; self.arg = p[1] if len(p) > 1 else None; return
        if t.startswith('.'): self.op = self.kind = 'directive'; return
        op, _, rest = t.partition(' ')
        self.op = op
        ops = [regs_of(x) for x in rest.split(',')]
        flat = lambda l: {r for o in l for g in o for r in g}
        first, others = (flat(ops[:1]), flat(ops[1:]))
        if op.startswith('v_mfma'):
            self.kind = 'mfma'; self.defs = first; self.uses = others
            self.passes = 8 if '32x32' in op else 4
            self.srcc = tuple(sorted(flat(ops[3:4]))); self.ab = flat(ops[1:3])
        elif op.startswith('v_'):
            self.kind = 'trans' if op.replace('_e32', '').replace('_e64', '') in TRANS else 'valu'
            self.defs = first; self.uses = others
            if op.startswith(('v_fmac', 'v_dot2c', 'v_writelane', 'v_permlane', 'v_pk_fmac')) or 'dpp' in op or 'row_' in t: self.uses |= first
            if op.startswith('v_permlane'): self.defs = first | others
            if '_co_' in op or op.startswith('v_div_scale'): self.defs = flat(ops[:2]); self.uses = flat(ops[2:])
            if op.startswith('v_cmpx'): self.defs |= {('exec', 0)}
            self.dpp = 'dpp' in op or 'row_' in t or 'quad_perm' in t or 'wave_' in t
        elif op.startswith('ds_'):
            self.kind = 'lds'
            if op.startswith(('ds_read', 'ds_bpermute', 'ds_permute', 'ds_swizzle')) or '_rtn' in op: self.defs = first; self.uses = others
            else: self.uses = first | others
            if 'addtid' in op: self.uses = self.uses | {('m0', 0)}
        elif op.startswith(('buffer_', 'global_')):
            self.kind = 'vmem'
            words = t.split()
            if 'lds' in words or op.startswith('global_load_lds'):
                self.uses = first | others | {('m0', 0)}; self.arg = 'dma'
            elif '_load' in op:
                self.defs = first if tag != 'pf' else set(); self.uses = others
            elif '_atomic' in op:
                self.uses = first | others
                if 'sc0' in words: self.defs = first
            else:
                self.uses = first | others
                if 'x4' in op or 'x3' in op:
                    self.wide = first if op.startswith('buffer') else flat(ops[1:2])
        elif op.startswith(('s_load', 's_memtime', 's_memrealtime', 's_buffer_load')):
            self.kind = 'smem'; self.defs = first; self.uses = others
            if tag == 'spf': self.defs = set()
        elif op == 's_waitcnt': self.kind = 'wait'
        elif op == 's_nop': self.kind = 'nop'
        elif op.startswith(('s_cbranch', 's_branch', 's_barrier', 's_endpgm', 's_sleep', 's_setprio')): self.kind = 'ctl'
        elif op.startswith('s_cmp') or op.startswith('s_bitcmp'): self.kind = 'salu'; self.uses = first | others
        elif op.startswith('s_'):
            self.kind = 'salu'; self.defs = first; self.uses = others
            if 'saveexec' in op: self.defs |= {('exec', 0)}
        else: raise ValueError(txt)

class State:
    def __init__(s):
        s.vm = []
        s.lg = []
        s.hist = []
        s.pos = 0
    def copy(s):
        n = State(); n.vm = list(s.vm); n.lg = list(s.lg); n.hist = list(s.hist); n.pos = s.pos; return n

def need_states(p, c):
    n = 0
    pv = p.kind in ('valu', 'trans')
    cv = c.kind in ('valu', 'trans')
    vg = lambda S: {r for r in S if r[0] in 'va' and r[0] != 'vcc'}
    sg = lambda S: {r for r in S if r[0] in ('s', 'vcc')}
    if pv:
        d = vg(p.defs)
        if c.kind == 'mfma' and d & c.uses: n = max(n, 2)
        if cv and d & c.uses:
            if c.op.startswith('v_permlane') or c.dpp: n = max(n, 2)
            if c.op.startswith(('v_readlane', 'v_readfirstlane')): n = max(n, 1)
            if p.kind == 'trans': n = max(n, 1)
        if p.kind == 'trans' and c.kind in ('lds', 'vmem') and d & c.uses: n = max(n, 1)
        if p.op.startswith('v_dot') and c.op != p.op and d & (c.uses | c.defs): n = max(n, 3)
        sd = sg(p.defs)
        if sd & c.uses:
            if cv: n = max(n, 4 if c.op.startswith(('v_readlane', 'v_writelane')) else 2)
            if c.kind == 'vmem': n = max(n, 5)
            if c.kind in ('salu', 'smem'): n = max(n, 1)
        if ('exec', 0) in p.defs: n = max(n, 5)
    if p.kind == 'mfma':
        big = 8 if p.passes == 4 else 12
        if c.kind == 'mfma':
            if p.defs & c.ab: n = max(n, big)
            if p.defs & set(c.srcc):
                if not (tuple(sorted(p.defs)) == c.srcc and p.passes == c.passes): n = max(n, big - 2)
            elif p.defs & c.defs: n = max(n, big)
        elif p.defs & (c.uses | c.defs): n = max(n, big)
        if cv and set(p.srcc) & c.defs: n = max(n, p.passes - 1)
    if p.kind == 'salu' and ('m0', 0) in p.defs and ('m0', 0) in c.uses and c.kind in ('vmem', 'lds'): n = max(n, 1)
    if p.kind == 'vmem' and p.wide and (p.wide & c.defs): n = max(n, 2)
    return n

class Prog:
    def __init__(self):
        self.items = []
        self.stack = [self.items]
    def __call__(self, txt, tag=None):
        for l in txt.strip('\n').split('\n'):
            l = l.strip()
            if l and not l.startswith(';'): self.stack[-1].append(I(l, tag))
        return self
    def extend(self, lst):
        for x in lst:
            if isinstance(x, I): self.stack[-1].append(x)
            elif isinstance(x, tuple): self(x[0], x[1])
            else: self(x)
    def loop_begin(self, label):
        body = []; self.stack[-1].append(('loop', body)); self.stack.append(body); self(label + ':')
    def loop_end(self): self.stack.pop()

    def _sim(self, items, st):
        changed = False
        for it in items:
            if isinstance(it, tuple):
                while True:
                    s1 = st.copy(); c1 = self._sim(it[1], s1)
                    s2 = s1.copy(); c2 = self._sim(it[1], s2)
                    changed |= c1 or c2
                    if not (c1 or c2): break
                st.vm, st.lg, st.hist, st.pos = s2.vm, s2.lg, s2.hist, s2.pos
                assert len(s1.vm) <= len(s2.vm) or True
                continue
            c = it
            if c.kind in ('label', 'directive'): continue
            touched = c.uses | c.defs
            vm = lg = None
            if c.kind == 'pseudo':
                if c.op == '@waitvm':
                    idx = [i for i, (d, t) in enumerate(st.vm) if c.arg is None or t == c.arg]
                    if idx: vm = len(st.vm) - 1 - idx[-1]
                elif c.op == '@waitlg':
                    if st.lg: lg = 0
            else:
                idx = [i for i, (d, t) in enumerate(st.vm) if d & touched]
                if idx: vm = len(st.vm) - 1 - idx[-1]
                idx = [i for i, (d, sm) in enumerate(st.lg) if d & touched]
                if idx: lg = 0 if any(sm for d, sm in st.lg) else len(st.lg) - 1 - idx[-1]
            if vm is not None:
                vm = min(vm, 62)
                if c.vm is None or vm < c.vm: c.vm = vm; changed = True
            if lg is not None:
                lg = min(lg, 14)
                if c.lg is None or lg < c.lg: c.lg = lg; changed = True
            if c.vm is not None: st.vm = st.vm[max(0, len(st.vm) - c.vm):] if c.vm else []
            if c.lg is not None:
                if c.lg == 0: st.lg = []
                elif not any(sm for d, sm in st.lg): st.lg = st.lg[max(0, len(st.lg) - c.lg):]
            if c.vm is not None or c.lg is not None: st.pos += 1
            if c.kind == 'pseudo': continue
            if c.kind == 'wait':
                m = re.search(r'vmcnt\((\d+)\)', c.txt)
                if m: k = int(m.group(1)); st.vm = st.vm[max(0, len(st.vm) - k):] if k else []
                m = re.search(r'lgkmcnt\((\d+)\)', c.txt)
                if m:
                    k = int(m.group(1))
                    if k == 0: st.lg = []
                    elif not any(sm for d, sm in st.lg): st.lg = st.lg[max(0, len(st.lg) - k):]
                st.pos += 1; continue
            if c.kind == 'nop':
                st.pos += int(c.txt.split()[1]) + 1; continue
            need = 0
            for (pp, p) in st.hist:
                k = need_states(p, c)
                if k: need = max(need, k - (st.pos - pp - 1))
            if need > c.nops: c.nops = need; changed = True
            st.pos += c.nops
            st.hist.append((st.pos, c)); st.pos += 1
            st.hist = [(pp, p) for (pp, p) in st.hist if st.pos - pp <= 20]
            if c.kind == 'vmem': st.vm.append((c.defs, c.tag))
            elif c.kind == 'lds': st.lg.append((c.defs, False))
            elif c.kind == 'smem': st.lg.append((c.defs, True))
        return changed

    def finalize(self):
        while self._sim(self.items, State()): pass
        out = []
        def walk(items):
            for it in items:
                if isinstance(it, tuple): walk(it[1]); continue
                w = []
                if it.vm is not None: w.append(f"vmcnt({it.vm})")
                if it.lg is not None: w.append(f"lgkmcnt({it.lg})")
                if w: out.append("    s_waitcnt " + " ".join(w))
                n = it.nops
                while n > 0:
                    k = min(n, 16); out.append(f"    s_nop {k-1}"); n -= k
                if it.kind == 'pseudo': continue
                out.append(it.txt if it.kind in ('label', 'directive') else "    " + it.txt)
        walk(self.items)
        return out

def L(txt, tag=None):
    return [I(l.strip(), tag) for l in txt.strip('\n').split('\n') if l.strip() and not l.strip().startswith(';')]

def merge(main, fill, groups=None):
    out = []; n, m = len(main), len(fill); j = 0
    if n == 0: return [x for g in fill for x in g]
    for i, x in enumerate(main):
        out.extend(x)
        want = ((i + 1) * m) // n
        while j < want: out.extend(fill[j]); j += 1
    return out
```

```python
import sys, math
from asm import R, v, s, Alloc, kernel_desc
from prog import Prog, I, L, merge

KNAME = "gated_mix__ssm_conv_s4d__linear_attn_block__prompt_kernel"
MB = 1 << 20
UT, AT, OF, PART, ZP, GG = 0, 4*MB, 8*MB, 12*MB, 13*MB, 13*MB + 512*1024
F1, F2, F3 = 14*MB, 14*MB + 256*1024, 14*MB + 512*1024
FS = 64
STAMP_OFF = 200 << 20
ASZ, BSZ = 16384, 24576
SSZ = ASZ + BSZ
U0, USZ = 40960, 4608
KB0, KSZ = 122880, 8704
XS012, XS3, S3B = 75776, 157696, 159744
LF, S3F = U0, U0 + 16
def wo_addr(kt):
    if kt < 2: return 59392 + 8192*kt
    if kt < 7: return 81920 + 8192*(kt-2)
    if kt < 12: return 8192*(kt-7)
    return KB0 + KSZ*(kt-12)
LOG2E = 0x3fb8aa3b
INV2PI = 0x3e22f983
SPIN_G, SPIN_L = 40000, 400000
MF = "v_mfma_f32_16x16x32_bf16"

def gen(stamps=False, opts=None):
    o = dict(ring=16, prio=1, codepf=True)
    o.update(opts or {})
    S = Alloc('s', 3, 102)
    sW = S()
    kp = R('s', 4, 16); kq = R('s', 20, 8); kr = R('s', 28, 4); S.next = 32
    pX, pLA, pAI, pCR, pCI, pLDT, pDS = [kp.sub(2*i, 2) for i in range(7)]
    pWQ, pWO, pGW, pOUT = [kq.sub(2*i, 2) for i in range(4)]
    pDBG, pWS = kr.sub(0, 2), kr.sub(2, 2)
    srdWS = S(4)
    sMT, sHP, sMT2, sCT, sT, sT2, sT3, sCnt = [S() for _ in range(8)]
    sEx = S(2)
    st = [S(2)] if stamps else None
    smark = S.mark()
    def alloc_stamps(n):
        if stamps:
            del st[1:]
            st.extend(S(2) for _ in range(n - 1))
    def stamp(P, i):
        if stamps: P(f"s_memrealtime {st[i]}")
    def dump_stamps(P, vT, d, role):
        if not stamps: return
        P(f"""s_waitcnt vmcnt(0) lgkmcnt(0)
        s_lshl_b32 {sT}, s2, 3
        s_add_u32 {sT}, {sT}, {sW}
        s_lshl_b32 {sT}, {sT}, 7
        s_add_u32 {sT}, {sT}, {STAMP_OFF}
        v_mov_b32 {vT}, {sT}
        s_mov_b64 exec, 1""")
        for i in range(len(st)):
            P(f"""v_mov_b32 {d[0]}, {st[i][0]}
            v_mov_b32 {d[1]}, {st[i][1]}
            buffer_store_dwordx2 {d.sub(0,2)}, {vT}, {srdWS}, 0 offen offset:{8*i}
            s_nop 1""")
    def srd(P, r, p, size):
        P(f"s_mov_b32 {r[0]}, {p[0]}\ns_mov_b32 {r[1]}, {p[1]}\ns_mov_b32 {r[2]}, {size}\ns_mov_b32 {r[3]}, 0x20000")
    uid = [0]
    def lab(n): uid[0] += 1; return f"L_{n}_{uid[0]}"
    def poll_global(P, vaddr, vtmp, want, srdr):
        l0, l1 = lab("poll"), lab("polld")
        P(f"s_mov_b32 {sCnt}, 0")
        P.loop_begin(l0)
        P(f"""buffer_load_dword {vtmp}, {vaddr}, {srdr}, 0 offen sc1
        s_add_u32 {sCnt}, {sCnt}, 1
        s_cmp_gt_u32 {sCnt}, {SPIN_G}
        s_waitcnt vmcnt(0)
        s_cbranch_scc1 {l1}
        v_cmp_ne_u32 vcc, {want}, {vtmp}
        s_cbranch_vccnz {l0}""")
        P.loop_end()
        P(f"{l1}:")
    def bf16r(P, dst, src):
        P(f"v_cvt_pk_bf16_f32 {dst}, {src}, {src}\nv_lshlrev_b32 {dst}, 16, {dst}")

    E = Prog()
    E(f"""s_cmp_ge_u32 s2, 256
    s_cbranch_scc1 L_end
    s_load_dwordx16 {kp}, s[0:1], 0
    s_load_dwordx8 {kq}, s[0:1], 64
    s_load_dwordx4 {kr}, s[0:1], 96""")
    stamp(E, 0)
    E(f"""v_lshrrev_b32 v1, 6, v0
    v_and_b32 v0, 63, v0
    s_and_b32 {sT}, s2, 7
    v_readfirstlane_b32 {sW}, v1
    s_lshr_b32 {sT2}, s2, 3
    s_and_b32 {sMT}, {sT}, 1
    s_lshl_b32 {sMT}, {sMT}, 3
    s_and_b32 {sT3}, {sT2}, 7
    s_add_u32 {sMT}, {sMT}, {sT3}
    s_lshr_b32 {sHP}, {sT}, 1
    s_lshl_b32 {sHP}, {sHP}, 2
    s_lshr_b32 {sT3}, {sT2}, 3
    s_add_u32 {sHP}, {sHP}, {sT3}
    s_and_b32 {sMT2}, {sT}, 3
    s_lshl_b32 {sMT2}, {sMT2}, 2
    s_and_b32 {sT3}, {sT2}, 3
    s_add_u32 {sMT2}, {sMT2}, {sT3}
    s_lshr_b32 {sCT}, {sT}, 2
    s_lshl_b32 {sCT}, {sCT}, 3
    s_lshr_b32 {sT3}, {sT2}, 2
    s_add_u32 {sCT}, {sCT}, {sT3}
    s_cmp_lt_u32 {sW}, 4
    s_cbranch_scc1 L_compute""")
    vL = v(0)

    P = Prog()
    S.reset(smark); V = Alloc('v', 1, 256)
    srdX, srdW, srdWO, srdXT, srdUT = S(4), S(4), S(4), S(4), S(4)
    sLW, sM0A, sM0B, sCH, sKB, sUB, sBase = [S() for _ in range(7)]
    soA = [S() for _ in range(4)]; soB = [S() for _ in range(6)]
    sPlo = S()
    alloc_stamps(8)
    vT, vT2 = V(), V()
    vAo = [V(), V()]; vBo = [V(), V()]
    P(f"""s_sub_u32 {sLW}, {sW}, 4
    v_lshrrev_b32 {vT}, 3, {vL}
    v_lshlrev_b32 {vAo[0]}, 11, {vT}
    v_mul_u32_u24 {vBo[0]}, 6144, {vT}
    v_lshrrev_b32 {vT}, 4, {vL}
    v_and_b32 {vT2}, 7, {vL}
    v_xor_b32 {vT2}, {vT2}, {vT}
    v_lshl_add_u32 {vAo[0]}, {vT2}, 4, {vAo[0]}
    v_and_b32 {vT}, 1, {vT}
    v_lshlrev_b32 {vT}, 1, {vT}
    v_and_b32 {vT2}, 7, {vL}
    v_xor_b32 {vT2}, {vT2}, {vT}
    v_lshl_add_u32 {vBo[0]}, {vT2}, 4, {vBo[0]}
    s_lshl_b32 {sT}, {sMT}, 18
    s_lshl_b32 {sT2}, {sLW}, 16
    s_add_u32 {sT}, {sT}, {sT2}
    v_add_u32 {vAo[0]}, {sT}, {vAo[0]}
    v_xor_b32 {vAo[1]}, 64, {vAo[0]}
    s_lshl_b32 {sT}, {sHP}, 7
    s_mul_i32 {sT2}, {sLW}, {2*8*6144}
    s_add_u32 {sT}, {sT}, {sT2}
    v_add_u32 {vBo[0]}, {sT}, {vBo[0]}
    v_xor_b32 {vBo[1]}, 64, {vBo[0]}
    s_lshl_b32 {sM0A}, {sLW}, 12
    s_lshl_b32 {sM0B}, {sLW}, 11
    s_add_u32 {sM0B}, {sM0B}, {ASZ}""")
    for i in range(4): P(f"s_mov_b32 {soA[i]}, {16384*i - 1024*i}")
    for i in range(6): P(f"s_mov_b32 {soB[i]}, {(i>>1)*2048 + (i&1)*(8*6144 - 1024)}")
    P("s_waitcnt lgkmcnt(0)")
    srd(P, srdX, pX, 4*MB); srd(P, srdW, pWQ, 6*MB)
    def dma_tile(t):
        base = (t % 3) * SSZ; tag = f"t{t}"
        g = []
        for i in range(4):
            pre = L(f"s_add_u32 m0, {sM0A}, {base}") if i == 0 else []
            g.append(pre + L(f"buffer_load_dwordx4 {vAo[i&1]}, {srdX}, {soA[i]} offen offset:{1024*i} lds", tag))
        for i in range(6):
            pre = L(f"s_add_u32 m0, {sM0B}, {base + (i>>1)*8192}") if (i & 1) == 0 else []
            g.append(pre + L(f"buffer_load_dwordx4 {vBo[i&1]}, {srdW}, {soB[i]} offen offset:{1024*(i&1)} lds", tag))
        g[-1] = g[-1] + L(f"""s_add_u32 {srdX[0]}, {srdX[0]}, 128
        s_addc_u32 {srdX[1]}, {srdX[1]}, 0
        s_add_u32 {srdW[0]}, {srdW[0]}, {64*6144}
        s_addc_u32 {srdW[1]}, {srdW[1]}, 0""")
        return g
    for t in range(2):
        for g in dma_tile(t): P.extend(g)
    srd(P, srdWS, pWS, 0x10000000); srd(P, srdWO, pWO, 2*MB)
    srd(P, srdXT, pX, 4*MB); srd(P, srdUT, pWS, 4*MB)
    vPar = V(4); vLdt, vDsk = V(), V()
    xr = V(32); xo = V(32)
    vUA = V()
    P(f"""s_cmp_lt_u32 {sLW}, 2
    s_cselect_b32 {srdXT[2]}, {srdXT[2]}, 0
    s_cselect_b32 {srdUT[2]}, {srdUT[2]}, 0
    s_lshr_b32 {sT}, s2, 3
    s_lshl_b32 {sT}, {sT}, 5
    s_lshl_b32 {sT2}, {sLW}, 3
    s_add_u32 {sT}, {sT}, {sT2}
    s_and_b32 {sT2}, s2, 7
    s_add_u32 {sCH}, {sT}, {sT2}
    s_mul_i32 {sKB}, {sLW}, {KSZ}
    s_add_u32 {sKB}, {sKB}, {KB0}
    s_mul_i32 {sUB}, {sLW}, {USZ}
    s_add_u32 {sUB}, {sUB}, {U0}
    s_lshl_b32 {sT}, {sCH}, 8
    v_lshl_add_u32 {vT}, {vL}, 2, {sT}
    global_load_dword {vPar[0]}, {vT}, {pLA}
    global_load_dword {vPar[1]}, {vT}, {pAI}
    global_load_dword {vPar[2]}, {vT}, {pCR}
    global_load_dword {vPar[3]}, {vT}, {pCI}
    s_lshl_b32 {sT}, {sCH}, 1
    v_mov_b32 {vT}, {sT}
    global_load_ushort {vLdt}, {vT}, {pLDT}
    global_load_ushort {vDsk}, {vT}, {pDS}""")
    P(f"""s_and_b32 {sT}, {sLW}, 1
    s_lshl_b32 {sT}, {sT}, 17
    s_lshl_b32 {sT2}, {sMT}, 18
    s_add_u32 {sT}, {sT}, {sT2}
    s_lshl_b32 {sT2}, {sHP}, 7
    s_add_u32 {sT}, {sT}, {sT2}
    v_lshrrev_b32 {vT}, 3, {vL}
    v_lshlrev_b32 {vT}, 14, {vT}
    v_and_b32 {vT2}, 7, {vL}
    v_lshl_add_u32 {vT}, {vT2}, 4, {vT}
    v_add_u32 {vT}, {sT}, {vT}""")
    for i in range(8):
        if i % 2 == 0: P(f"s_mov_b32 {sT}, {i*2048}")
        P(f"buffer_load_dwordx4 {xr.sub(4*i,4)}, {vT}, {srdXT}, {sT} offen offset:{(i&1)*2048}")
    vF3, vZero = V(), V()
    P(f"""s_mul_i32 {sT}, {sCH}, {FS}
    s_add_u32 {sT}, {sT}, {F3}
    v_mov_b32 {vF3}, {sT}
    v_mov_b32 {vZero}, 0
    s_mov_b64 exec, 1
    buffer_store_dword {vZero}, {vF3}, {srdWS}, 0 offen sc1
    s_mov_b64 exec, -1""", "early")
    P(f"""s_lshl_b32 {sT}, {sHP}, 18
    s_lshl_b32 {sT2}, {sMT}, 10
    s_add_u32 {sT}, {sT}, {sT2}
    s_and_b32 {sT2}, {sLW}, 1
    s_lshl_b32 {sT2}, {sT2}, 9
    s_add_u32 {sT}, {sT}, {sT2}
    v_bfe_u32 {vT}, {vL}, 2, 1
    v_lshlrev_b32 {vUA}, 17, {vT}
    v_lshrrev_b32 {vT}, 3, {vL}
    v_lshl_add_u32 {vUA}, {vT}, 6, {vUA}
    v_and_b32 {vT}, 3, {vL}
    v_lshl_add_u32 {vUA}, {vT}, 4, {vUA}
    v_add_u32 {vUA}, {sT}, {vUA}""")
    P("@waitvm t0\ns_barrier")
    stamp(P, 1)

    side = []
    def G(txt, tag=None): side.extend([[x] for x in L(txt, tag)])
    def GA(txt, tag=None): side.append(L(txt, tag))
    sPhi = S()
    G(f"s_mov_b32 {sPlo}, 0x05040100\ns_mov_b32 {sPhi}, 0x07060302")
    for jj in range(8):
        for q in range(4):
            G(f"v_perm_b32 {xo[4*jj+q]}, {xr[4*(2*q+1) + (jj>>1)]}, {xr[4*(2*q) + (jj>>1)]}, {sPhi if jj & 1 else sPlo}")
        GA(f"s_mov_b32 {sBase}, {jj*16384}\nbuffer_store_dwordx4 {xo.sub(4*jj,4)}, {vUA}, {srdUT}, {sBase} offen sc1", "early")
    n_early = len(side)
    vE = V()
    kmark = V.mark()
    vKW, vKR, vDt = V(), V(), V()
    al, be, cr, ci, ta, tb_ = [V() for _ in range(6)]
    W = {p: (V(), V(), V()) for p in (1, 2, 4, 8, 256)}
    xa, xb, xc, xd = (V(), V()), (V(), V()), (V(), V()), (V(), V())
    pk = [V() for _ in range(4)]
    ff = xr; fe = xo
    kacc = V(16)
    G(f"""v_lshl_add_u32 {vKW}, {vL}, 2, {sKB}
    v_and_b32 {ta}, 31, {vL}
    v_mul_u32_u24 {vKR}, 272, {ta}
    v_lshrrev_b32 {ta}, 5, {vL}
    v_lshl_add_u32 {vKR}, {ta}, 4, {vKR}
    v_add_u32 {vKR}, {sKB}, {vKR}
    v_lshlrev_b32 {vDt}, 16, {vLdt}
    v_mul_f32 {vDt}, {LOG2E}, {vDt}
    v_exp_f32 {vDt}, {vDt}
    v_lshlrev_b32 {vDsk}, 16, {vDsk}
    v_cvt_pk_bf16_f32 {vDt}, {vDt}, {vDt}
    v_lshlrev_b32 {vDt}, 16, {vDt}""")
    pki = [0]
    def put(row_list, x, neg):
        r = pk[pki[0] % 4]; pki[0] += 1
        G(f"v_cvt_pk_bf16_f32 {r}, {x[0]}, {'-' if neg else ''}{x[1]}")
        for row in row_list: G(f"ds_write_b32 {vKW}, {r} offset:{row*272}")
    def cmul(y, x, w):
        G(f"""v_mul_f32 {y[0]}, {x[1]}, {w[2]}
        v_mul_f32 {y[1]}, {x[1]}, {w[0]}
        v_fmac_f32 {y[0]}, {x[0]}, {w[0]}
        v_fmac_f32 {y[1]}, {x[0]}, {w[1]}""")
    rho = lambda r, h: 8*(r >> 2) + 4*h + (r & 3)
    rows = {}
    def addrow(hi, r, h): rows.setdefault(hi, []).append(rho(r, h))
    for r in range(9): addrow(r, r, 0)
    for r, off in enumerate([0, 0, 2, 4, 4, 4, 6, 8, 8]): addrow(256 + off, r, 1)
    for h in range(2):
        for k in range(3): addrow(512 + 256*h + 4*k, 9 + k, h)
        for k in range(2): addrow(1024 + 256*h + 8*k, 12 + k, h); addrow(1536 + 256*h + 8*k, 14 + k, h)
    assert sorted(x for l in rows.values() for x in l) == list(range(32))
    for st_ in range(2):
        unp = (lambda d, x: f"v_lshlrev_b32 {d}, 16, {x}") if st_ == 0 else (lambda d, x: f"v_and_b32 {d}, 0xffff0000, {x}")
        G(f"""{unp(al, vPar[0])}
        v_mul_f32 {al}, {LOG2E}, {al}
        v_exp_f32 {al}, {al}
        {unp(be, vPar[1])}
        {unp(cr, vPar[2])}
        v_cvt_pk_bf16_f32 {al}, {al}, {al}
        {unp(ci, vPar[3])}
        v_lshlrev_b32 {al}, 16, {al}
        v_mul_f32 {al}, {al}, {vDt}
        v_mul_f32 {be}, {be}, {vDt}
        v_mul_f32 {cr}, {cr}, {vDt}
        v_mul_f32 {ci}, {ci}, {vDt}
        v_mul_f32 {al}, {LOG2E ^ 0x80000000}, {al}
        v_mul_f32 {be}, {INV2PI}, {be}
        v_add_f32 {cr}, {cr}, {cr}
        v_add_f32 {ci}, {ci}, {ci}""")
        import struct
        f2u = lambda x: struct.unpack('<I', struct.pack('<f', x))[0]
        for p in (8, 1, 256):
            w = W[p]
            G(f"""v_mul_f32 {ta}, {f2u(float(p))}, {al}
            v_mul_f32 {tb_}, {f2u(float(p))}, {be}
            v_exp_f32 {ta}, {ta}
            v_fract_f32 {tb_}, {tb_}
            v_cos_f32 {w[0]}, {tb_}
            v_sin_f32 {w[1]}, {tb_}
            v_mul_f32 {w[0]}, {ta}, {w[0]}
            v_mul_f32 {w[1]}, {ta}, {w[1]}
            v_sub_f32 {w[2]}, 0, {w[1]}""")
        for p in (2, 4):
            cmul(W[p], W[p//2], W[p//2]); G(f"v_sub_f32 {W[p][2]}, 0, {W[p][1]}")
        r = pk[pki[0] % 4]; pki[0] += 1
        G(f"v_mov_b32 {r}, 0x3f80\nds_write_b32 {vKW}, {r} offset:0")
        put([1], W[8], False)
        cur = W[8]
        for j in range(2, 32):
            nx = xa if cur is not xa else xb
            cmul(nx, cur, W[8]); put([j], nx, False); cur = nx
        for ks in range(8): G(f"ds_read_b128 {ff.sub(4*ks,4)}, {vKR} offset:{32*ks}")
        base = (cr, ci); put(rows[0], base, True)
        def chain(b, hi0, step, n):
            cur = b
            for k in range(1, n):
                nx = xa if cur is not xa else xb
                cmul(nx, cur, W[step]); put(rows[hi0 + step*k], nx, True); cur = nx
        chain(base, 0, 1, 9)
        for q in range(1, 8):
            nb = xc if base is not xc else xd
            cmul(nb, base, W[256]); base = nb
            put(rows[256*q], base, True)
            if q == 1: chain(base, 256, 2, 5)
            elif q < 4: chain(base, 256*q, 4, 3)
            else: chain(base, 256*q, 8, 2)
        for ks in range(8): G(f"ds_read_b128 {fe.sub(4*ks,4)}, {vKR} offset:{32*ks}")
        for ks in range(8):
            c = "0" if (st_ == 0 and ks == 0) else str(kacc)
            G(f"v_mfma_f32_32x32x16_bf16 {kacc}, {fe.sub(4*ks,4)}, {ff.sub(4*ks,4)}, {c}")
    vKX = V(); e0, e1 = V(4), V(4); sel = [V(), V()]
    k = kacc
    G(f"""v_lshlrev_b32 {ta}, 4, {vL}
    v_sub_u32 {vKX}, {4080-3072}, {ta}
    v_add_u32 {vKX}, {sKB}, {vKX}
    v_cmp_eq_u32 vcc, 0, {vL}
    v_cndmask_b32 {ta}, 0, {vDsk}, vcc
    v_and_b32 {tb_}, 1, {vL}
    v_add_f32 {k[0]}, {k[0]}, {ta}
    v_cmp_eq_u32 vcc, 0, {tb_}
    v_cndmask_b32 {sel[0]}, {k[13]}, {k[12]}, vcc
    v_cndmask_b32 {sel[1]}, {k[15]}, {k[14]}, vcc""")
    seqs = [[k[i] for i in range(9)],
            [k[9]]*3 + [k[10]]*3 + [k[11]]*3,
            [k[12]]*4 + [sel[0]] + [k[13]]*4,
            [k[14]]*4 + [sel[1]] + [k[15]]*4]
    for Pi, q in enumerate(seqs):
        for d in range(4): G(f"v_cvt_pk_bf16_f32 {e0[d]}, {q[7-2*d]}, {q[6-2*d]}")
        G(f"ds_write_b128 {vKX}, {e0} offset:{3072 - 1024*Pi}")
        for d in range(4): G(f"v_cvt_pk_bf16_f32 {e1[d]}, {q[8-2*d]}, {q[7-2*d]}")
        G(f"ds_write_b128 {vKX}, {e1} offset:{4160 + 3072 - 1024*Pi}")
    G(f"""v_cvt_pk_bf16_f32 {ta}, {k[0]}, {vZero}
    v_cmp_eq_u32 vcc, 0, {vL}
    v_min_u32 {tb_}, 7, {vL}
    v_cndmask_b32 {ta}, 0, {ta}, vcc
    v_lshl_add_u32 {tb_}, {tb_}, 2, {sKB}
    ds_write_b32 {tb_}, {vZero} offset:4096
    ds_write_b32 {tb_}, {ta} offset:{4160+4096}""")
    NSL = 13
    cuts = [0] + [n_early + ((len(side) - n_early) * i) // (NSL - 1) for i in range(NSL)]
    for it in range(14):
        sl = side[cuts[it]:cuts[it+1]] if it < NSL else []
        if it == 12:
            P(f"s_mov_b32 {srdXT[2]}, 4\nbuffer_load_dword {vE}, {vZero}, {srdXT}, 0 offen sc1")
        P.extend(merge(dma_tile(it + 2), sl))
        if it == 2: P("@waitvm early")
        if it == 3:
            P(f"""s_cmp_eq_u32 {sLW}, 0
            s_cselect_b32 {sT}, 4, 0
            s_mov_b32 {srdXT[0]}, {pDBG[0]}
            s_mov_b32 {srdXT[1]}, {pDBG[1]}
            s_mov_b32 {srdXT[2]}, {sT}
            v_mov_b32 {vE}, 1
            s_mov_b64 exec, 1
            buffer_atomic_add {vE}, {vZero}, {srdXT}, 0 offen sc1
            s_mov_b64 exec, -1""")
        if it == 12:
            P(f"v_cmp_ne_u32 vcc, 256, {vE}\ns_cbranch_vccnz L_eslow\nL_eback:")
            OOL = Prog(); OOL("L_eslow:"); poll_global(OOL, vZero, vE, 256, srdXT); OOL("s_branch L_eback")
        P(f"@waitvm t{it+1}\ns_barrier")
    stamp(P, 2)
    V.reset(kmark)
    vUD, vWO, vWO2 = V(), V(), V()
    z4 = V(4)
    P(f"""s_lshl_b32 {sT}, s2, 14
    s_lshl_b32 {sT2}, {sLW}, 4
    s_add_u32 {sT}, {sT}, {sT2}
    v_lshl_add_u32 {vUD}, {vL}, 6, {sT}
    s_add_u32 m0, {sUB}, 512""")
    for i in range(4):
        P(f"s_mov_b32 {sBase}, {UT + 3072*i}")
        P(f"buffer_load_dwordx4 {vUD}, {srdWS}, {sBase} offen offset:{1024*i} sc1 lds", "uT")
    P(f"""v_lshrrev_b32 {vT}, 3, {vL}
    v_lshlrev_b32 {vWO2}, 11, {vT}
    v_lshrrev_b32 {vT}, 4, {vL}
    v_lshlrev_b32 {vT}, 1, {vT}
    v_and_b32 {vT2}, 7, {vL}
    v_xor_b32 {vT}, {vT}, {vT2}
    v_lshl_add_u32 {vWO2}, {vT}, 4, {vWO2}
    s_lshl_b32 {sT}, {sCT}, 7
    v_add_u32 {vWO2}, {sT}, {vWO2}
    s_lshl_b32 {sT}, {sLW}, 15
    v_add_u32 {vWO}, {sT}, {vWO2}
    s_lshl_b32 {sM0A}, {sLW}, 11""")
    def dma_wo(kt):
        P(f"""s_add_u32 m0, {sM0A}, {wo_addr(kt)}
        s_mov_b32 {sBase}, {kt*131072}
        buffer_load_dwordx4 {vWO}, {srdWO}, {sBase} offen lds
        s_mov_b32 {sBase}, {kt*131072 + 16384 - 1024}
        buffer_load_dwordx4 {vWO}, {srdWO}, {sBase} offen offset:1024 lds""", "wo")
    dma_wo(0); dma_wo(1)
    P(f"""v_lshl_add_u32 {vT}, {vL}, 3, {sUB}
    v_mov_b32 {z4[0]}, 0
    v_mov_b32 {z4[1]}, 0
    ds_write_b64 {vT}, {z4.sub(0,2)}""")
    P("@waitvm t15\n@waitlg\ns_barrier")
    for kt in range(2, 7): dma_wo(kt)
    vU = V(); vTA = [V() for _ in range(4)]; vLF = V(); vOne = V()
    P(f"""v_and_b32 {vT}, 15, {vL}
    v_lshrrev_b32 {vT2}, 4, {vL}
    v_lshlrev_b32 {vU}, 5, {vT}
    v_lshl_add_u32 {vU}, {vT2}, 4, {vU}
    s_add_u32 {sT}, {sUB}, 480
    v_add_u32 {vU}, {sT}, {vU}
    v_lshlrev_b32 {vTA[0]}, 4, {vT2}
    v_lshrrev_b32 {vT2}, 1, {vT}
    v_lshlrev_b32 {vT2}, 2, {vT2}
    v_sub_u32 {vTA[0]}, {vTA[0]}, {vT2}
    v_and_b32 {vT}, 1, {vT}
    v_xor_b32 {vT}, 1, {vT}
    v_mul_u32_u24 {vT}, {4160+4}, {vT}
    v_add_u32 {vTA[0]}, {vTA[0]}, {vT}
    s_add_u32 {sT}, {sKB}, {4*(1015-128)}
    v_add_u32 {vTA[0]}, {sT}, {vTA[0]}
    v_subrev_u32 {vTA[1]}, 1024, {vTA[0]}
    v_subrev_u32 {vTA[2]}, 2048, {vTA[0]}
    v_subrev_u32 {vTA[3]}, 3072, {vTA[0]}
    s_lshl_b32 {sT}, {sLW}, 2
    s_add_u32 {sT}, {sT}, {LF}
    v_mov_b32 {vLF}, {sT}
    v_mov_b32 {vOne}, 1
    s_barrier""")
    for kt in range(7, 12): dma_wo(kt)
    tf = [[V(4) for _ in range(8)], [xr.sub(4*i, 4) for i in range(8)]]
    uf = [[V(4) for _ in range(8)], [xo.sub(4*i, 4) for i in range(8)]]
    cacc = [V(4) for _ in range(8)]
    def creads(b):
        out = []
        for i in range(8):
            off = 0 if i & 1 else 128
            out.append(L(f"ds_read_b128 {uf[b][i]}, {vU} offset:{512*i}"))
            out.append(L(f"ds_read2_b32 {tf[b][i].sub(0,2)}, {vTA[i>>1]} offset0:{off} offset1:{off+1}"))
            out.append(L(f"ds_read2_b32 {tf[b][i].sub(2,2)}, {vTA[i>>1]} offset0:{off+2} offset1:{off+3}"))
        out.append(L("\n".join(f"v_subrev_u32 {r}, 64, {r}" for r in [vU] + vTA)))
        return out
    def cmf(b):
        prs = sorted([(i, j) for i in range(8) for j in range(8) if i + j <= 7], key=lambda p: (max(p), p))
        return [L(f"{MF} {cacc[i+j]}, {tf[b][i]}, {uf[b][j]}, {cacc[i+j]}") for i, j in prs]
    for c in cacc:
        for r in range(4): P(f"v_mov_b32 {c[r]}, 0")
    P("@waitvm uT")
    for g in creads(0): P.extend(g)
    P("s_barrier")
    stamp(P, 3)
    P(f"s_mov_b32 {sCnt}, 0")
    P.loop_begin("L_conv")
    for b in range(2):
        m = cmf(b); rd = creads(b ^ 1)
        P.extend(merge(m[:28], rd) + [x for g in m[28:] for x in g])
    P(f"""s_waitcnt vmcnt(0)
    ds_write_b32 {vLF}, {vOne}
    s_add_u32 {sCnt}, {sCnt}, 1
    s_cmp_lt_u32 {sCnt}, 4
    s_cbranch_scc1 L_conv""")
    P.loop_end()
    stamp(P, 4)
    P(f"""@waitlg
    s_add_u32 {sT}, {sLW}, 12
    s_lshl_b32 {sT}, {sT}, 17""")
    for j in range(8):
        if j % 4 == 0: P(f"s_add_u32 m0, {sKB}, {j*1024}")
        P(f"s_add_u32 {sBase}, {sT}, {j*16384 - (j%4)*1024}")
        P(f"buffer_load_dwordx4 {vWO2}, {srdWO}, {sBase} offen offset:{(j%4)*1024} lds", "wol")
    P(f"""v_and_b32 {vT}, 15, {vL}
    v_lshlrev_b32 {vT}, 4, {vT}
    v_bfe_u32 {vT2}, {vL}, 4, 1
    v_lshl_add_u32 {vT}, {vT2}, 9, {vT}
    v_lshrrev_b32 {vT2}, 5, {vL}
    v_lshl_add_u32 {vT}, {vT2}, 8, {vT}
    s_lshl_b32 {sT}, {sCH}, 12
    s_add_u32 {sT}, {sT}, {AT}""")
    for Pi in range(4):
        d = tf[0][Pi]; a0, a1 = cacc[2*Pi], cacc[2*Pi+1]
        P(f"""v_cvt_pk_bf16_f32 {d[0]}, {a0[0]}, {a0[1]}
        v_cvt_pk_bf16_f32 {d[1]}, {a0[2]}, {a0[3]}
        v_cvt_pk_bf16_f32 {d[2]}, {a1[0]}, {a1[1]}
        v_cvt_pk_bf16_f32 {d[3]}, {a1[2]}, {a1[3]}
        v_permlane16_swap_b32 {d[0]}, {d[2]}
        v_permlane16_swap_b32 {d[1]}, {d[3]}
        buffer_store_dwordx4 {d}, {vT}, {srdWS}, {sT} offen offset:{1024*Pi} sc1""")
    vAT = [V(), V()]
    P(f"""v_mov_b32 {vT2}, 2
    @waitvm wol
    ds_write_b32 {vLF}, {vT2}
    s_lshl_b32 {sT}, {sCT}, 2
    s_add_u32 {sT}, {sT}, {sLW}
    s_lshl_b32 {sT2}, {sT}, 4
    v_and_b32 {vT}, 15, {vL}
    v_add_u32 {vT}, {sT2}, {vT}
    v_mul_u32_u24 {vT}, {FS}, {vT}
    v_add_u32 {vT}, {F3}, {vT}
    v_lshrrev_b32 {vT2}, 4, {vL}
    v_lshlrev_b32 {vAT[0]}, 12, {vT2}
    v_and_b32 {vAT[1]}, 7, {vL}
    v_xor_b32 {vT2}, {vT2}, {vAT[1]}
    v_lshl_add_u32 {vAT[0]}, {vT2}, 4, {vAT[0]}
    v_bfe_u32 {vT2}, {vL}, 3, 1
    v_lshl_add_u32 {vAT[0]}, {vT2}, 8, {vAT[0]}
    s_lshl_b32 {sT}, {sT}, 16
    s_lshr_b32 {sT2}, {sMT2}, 1
    s_lshl_b32 {sT2}, {sT2}, 9
    s_add_u32 {sT}, {sT}, {sT2}
    s_and_b32 {sT2}, {sMT2}, 1
    s_lshl_b32 {sT2}, {sT2}, 7
    s_add_u32 {sT}, {sT}, {sT2}
    v_add_u32 {vAT[0]}, {sT}, {vAT[0]}
    v_xor_b32 {vAT[1]}, 64, {vAT[0]}
    s_waitcnt vmcnt(0)
    s_mov_b64 exec, 1
    buffer_store_dword {vOne}, {vF3}, {srdWS}, 0 offen sc1
    s_mov_b64 exec, -1""")
    stamp(P, 5)
    poll_global(P, vT, vE, 1, srdWS)
    stamp(P, 6)
    P(f"s_add_u32 m0, {sUB}, 512")
    for i in range(4):
        P(f"s_mov_b32 {sBase}, {AT + 16384*i - 1024*i}")
        P(f"buffer_load_dwordx4 {vAT[i&1]}, {srdWS}, {sBase} offen offset:{1024*i} sc1 lds")
    P(f"""v_mov_b32 {vT2}, 3
    s_waitcnt vmcnt(0)
    ds_write_b32 {vLF}, {vT2}
    s_waitcnt lgkmcnt(0)""")
    stamp(P, 7)
    dump_stamps(P, vT, z4, 1)
    P("s_endpgm")
    loader, vhiL, shiL = P, V.hi, S.hi

    P = Prog()
    S.reset(smark); V = Alloc('v', 1, 256)
    srdOUT = S(4)
    sWM, sWN, sHD, sIt, sStage, sDelta, sXS, sXP, sBase = [S() for _ in range(9)]
    sPC = S(2)
    alloc_stamps(12)
    vT, vT2, vZero, vOne, vF1, vF2 = [V() for _ in range(6)]
    vRA = [V(), V()]; vRB = [V() for _ in range(4)]
    fa = [[V(4) for _ in range(4)] for _ in range(2)]
    fb = [[V(4) for _ in range(6)] for _ in range(2)]
    acc = [[V(4) for _ in range(6)] for _ in range(4)]
    P("L_compute:")
    gx = [fa[0][i] for i in range(4)]; gw = [fa[1][0], fa[1][1]]
    P(f"""s_lshr_b32 {sWM}, {sW}, 1
    s_and_b32 {sWN}, {sW}, 1
    s_lshl_b32 {sHD}, {sHP}, 1
    s_add_u32 {sHD}, {sHD}, {sWN}
    s_lshl_b32 {sT}, {sMT}, 1
    s_add_u32 {sT}, {sT}, {sWM}
    s_lshl_b32 {sT}, {sT}, 5
    s_add_u32 {sT3}, {sT}, {sHD}
    s_lshl_b32 {sT}, {sT3}, 12
    v_lshlrev_b32 {vT2}, 4, {vL}
    v_add_u32 {vT}, {sT}, {vT2}
    s_waitcnt lgkmcnt(0)
    global_load_dwordx4 {gx[0]}, {vT}, {pX}
    global_load_dwordx4 {gx[1]}, {vT}, {pX} offset:1024
    global_load_dwordx4 {gx[2]}, {vT}, {pX} offset:2048
    global_load_dwordx4 {gx[3]}, {vT}, {pX} offset:3072
    global_load_dwordx4 {gw[0]}, {vT2}, {pGW}
    global_load_dwordx4 {gw[1]}, {vT2}, {pGW} offset:1024""")
    if o['codepf']:
        P(f"""s_getpc_b64 {sPC}
        L_pcref:
        s_sub_u32 {sPC[0]}, {sPC[0]}, L_pcref-{KNAME}
        s_subb_u32 {sPC[1]}, {sPC[1]}, 0
        s_lshr_b32 {sT}, s2, 3
        s_lshl_b32 {sT}, {sT}, 2
        s_add_u32 {sT}, {sT}, {sW}
        s_lshl_b32 {sT}, {sT}, 8
        v_lshl_add_u32 {vT}, {vL}, 2, {sT}
        v_min_u32 {vT}, L_codeend-{KNAME}-4, {vT}
        global_load_dword {fb[0][0][0]}, {vT}, {sPC}""")
    srd(P, srdWS, pWS, 0x10000000); srd(P, srdOUT, pOUT, 4*MB)
    P(f"""s_mul_i32 {sT}, {sT3}, {FS}
    s_add_u32 {sT}, {sT}, {F2}
    v_mov_b32 {vF2}, {sT}
    s_lshl_b32 {sT}, {sHD}, 1
    s_add_u32 {sT}, {sT}, {sWM}
    s_lshl_b32 {sT}, {sT}, 4
    s_add_u32 {sT}, {sT}, {sMT}
    s_mul_i32 {sT}, {sT}, {FS}
    s_add_u32 {sT}, {sT}, {F1}
    v_mov_b32 {vF1}, {sT}
    v_mov_b32 {vZero}, 0
    v_mov_b32 {vOne}, 1
    s_mov_b64 exec, 1
    buffer_store_dword {vZero}, {vF1}, {srdWS}, 0 offen sc1
    buffer_store_dword {vZero}, {vF2}, {srdWS}, 0 offen sc1
    s_mov_b64 exec, -1""")
    P(f"""s_lshl_b32 {sT}, {sWM}, 13
    v_and_b32 {vT}, 15, {vL}
    v_lshl_add_u32 {vRA[0]}, {vT}, 7, {sT}
    v_bfe_u32 {vT}, {vL}, 1, 3
    v_lshrrev_b32 {vT2}, 4, {vL}
    v_xor_b32 {vT}, {vT}, {vT2}
    v_lshl_add_u32 {vRA[0]}, {vT}, 4, {vRA[0]}
    v_xor_b32 {vRA[1]}, 64, {vRA[0]}
    v_lshlrev_b32 {vRB[0]}, 10, {vT2}
    v_bfe_u32 {vT}, {vL}, 2, 2
    v_lshl_add_u32 {vRB[0]}, {vT}, 7, {vRB[0]}
    s_lshl_b32 {sT}, {sWN}, 1
    v_bfe_u32 {vT}, {vL}, 3, 2
    v_xor_b32 {vT}, {sT}, {vT}
    v_lshl_add_u32 {vRB[0]}, {vT}, 5, {vRB[0]}
    v_and_b32 {vT}, 3, {vL}
    v_lshl_add_u32 {vRB[0]}, {vT}, 3, {vRB[0]}
    v_add_u32 {vRB[0]}, {ASZ}, {vRB[0]}
    v_xor_b32 {vRB[1]}, 32, {vRB[0]}
    s_lshl_b32 {sT}, {sWM}, 5
    v_xor_b32 {vRB[2]}, {sT}, {vRB[0]}
    v_xor_b32 {vRB[3]}, 32, {vRB[2]}
    s_mov_b32 {sIt}, 0
    s_mov_b32 {sStage}, 0""")
    for row in acc:
        for t in row:
            for r in range(4): P(f"v_mov_b32 {t[r]}, 0")
    g2 = fb[1][0]
    P(f"v_mov_b32 {g2[0]}, 0\nv_mov_b32 {g2[1]}, 0")
    for r in range(2):
        for h in range(2):
            for d in range(4): P(f"v_dot2c_f32_bf16 {g2[r]}, {gx[2*r+h][d]}, {gw[h][d]}")
    for ctl in ("row_shr:1 row_mask:0xf", "row_shr:2 row_mask:0xf", "row_shr:4 row_mask:0xf", "row_shr:8 row_mask:0xf", "row_bcast:15 row_mask:0xa", "row_bcast:31 row_mask:0xc"):
        for r in range(2): P(f"v_add_f32_dpp {g2[r]}, {g2[r]}, {g2[r]} {ctl} bank_mask:0xf")
    for r in range(2): bf16r(P, g2[r], g2[r])
    for r in range(2): P(f"v_mul_f32 {g2[r]}, {LOG2E ^ 0x80000000}, {g2[r]}")
    for r in range(2): P(f"v_exp_f32 {g2[r]}, {g2[r]}")
    for r in range(2): P(f"v_add_f32 {g2[r]}, 1.0, {g2[r]}")
    for r in range(2): P(f"v_rcp_f32 {g2[r]}, {g2[r]}")
    for r in range(2): bf16r(P, g2[r], g2[r])
    P(f"""s_lshl_b32 {sT}, {sT3}, 3
    s_add_u32 {sT}, {sT}, {GG}
    v_mov_b32 {vT}, {sT}
    s_mov_b32 {sEx[0]}, 0
    s_mov_b32 {sEx[1]}, 0x80000000
    s_mov_b64 exec, {sEx}
    buffer_store_dwordx2 {g2.sub(0,2)}, {vT}, {srdWS}, 0 offen sc1
    s_mov_b64 exec, -1
    s_barrier""")
    def reads(ks, buf):
        ra = [L(f"ds_read_b128 {fa[buf][mi]}, {vRA[ks]} offset:{mi*2048}") for mi in range(4)]
        rb = []
        for ni in range(6):
            ad = vRB[(ni & 1) + (2 if ni >= 4 else 0)]
            for t in range(2):
                rb.append(L(f"ds_read_b64_tr_b16 {fb[buf][ni].sub(2*t,2)}, {ad} offset:{(ni>>1)*8192 + ks*4096 + t*512}"))
        return ra[:1] + rb + ra[1:]
    def mfmas(buf):
        out = []
        for mi in range(4):
            for n in range(6):
                ni = n if mi % 2 == 0 else 5 - n
                a_, b_ = (fb[buf][ni], fa[buf][mi]) if ni < 2 else (fa[buf][mi], fb[buf][ni])
                out.append(L(f"{MF} {acc[mi][ni]}, {a_}, {b_}, {acc[mi][ni]}"))
        return out
    for g in reads(0, 0): P.extend(g)
    stamp(P, 1)
    P("s_waitcnt lgkmcnt(0)")
    P.loop_begin("L_gemm")
    m0_, m1_ = mfmas(0), mfmas(1)
    adv = L(f"""s_add_u32 {sStage}, {sStage}, 1
    s_mov_b32 {sDelta}, {SSZ}
    s_cmp_eq_u32 {sStage}, 3
    s_cselect_b32 {sDelta}, {(-2*SSZ) & 0xffffffff}, {sDelta}
    s_cselect_b32 {sStage}, 0, {sStage}""")
    adv2 = [L(f"v_add_u32 {r}, {sDelta}, {r}") for r in vRA + vRB]
    P.extend(merge(m0_[:16], reads(1, 1)))
    P.extend(merge(m0_[16:18], [[x] for x in adv]))
    P.extend(merge(m0_[18:], adv2))
    P("s_waitcnt lgkmcnt(0)")
    P.extend(m1_[0] + m1_[1])
    P("s_waitcnt vmcnt(1)\ns_barrier")
    P.extend(merge(m1_[2:18], reads(0, 0)))
    P.extend(merge(m1_[18:], [L(f"s_add_u32 {sIt}, {sIt}, 1"), L(f"s_cmp_lt_u32 {sIt}, 16")]))
    P("s_waitcnt lgkmcnt(0)\ns_cbranch_scc1 L_gemm")
    P.loop_end()
    stamp(P, 2)
    if o['prio']: P(f"s_setprio {o['prio']}")
    V.reset(fa[0][0].idx)
    fr_end = acc[0][0].idx
    tmp = [V() for _ in range(8)]
    pkf = [[V(4), V(4)] for _ in range(2)]; vf = [[V(4), V(4)] for _ in range(2)]
    kvt = [[V(4), V(4)] for _ in range(2)]; zt = [V(4), V(4)]
    ones = V(4); sEps = S(); sL2E = S()
    assert V.next <= fr_end, V.next
    V.next = acc[3][5].idx + 4
    def phi(tile, dst2):
        t0 = tmp[0:4]; t1 = tmp[4:8]
        for j in range(4): P(f"v_mul_f32 {t0[j]}, {sL2E}, {tile[j]}")
        for j in range(4): P(f"v_exp_f32_e64 {t0[j]}, {t0[j]} clamp")
        for j in range(4): P(f"v_max_f32 {t1[j]}, {sEps}, {tile[j]}")
        for j in range(4): P(f"v_add_f32 {t0[j]}, {t0[j]}, {t1[j]}")
        P(f"v_cvt_pk_bf16_f32 {dst2[0]}, {t0[0]}, {t0[1]}\nv_cvt_pk_bf16_f32 {dst2[1]}, {t0[2]}, {t0[3]}")
    P(f"s_mov_b32 {sEps}, 0x358637bd\ns_mov_b32 {sL2E}, {LOG2E}")
    for r in range(4): P(f"v_mov_b32 {ones[r]}, 0x3f803f80")
    P(f"""s_lshl_b32 {sXS}, {sW}, 11
    s_add_u32 {sXS}, {sXS}, {XS012}
    s_cmp_eq_u32 {sW}, 3
    s_cselect_b32 {sXS}, {XS3}, {sXS}
    s_xor_b32 {sT}, {sW}, 2
    s_lshl_b32 {sXP}, {sT}, 11
    s_add_u32 {sXP}, {sXP}, {XS012}
    s_cmp_eq_u32 {sT}, 3
    s_cselect_b32 {sXP}, {XS3}, {sXP}""")
    for p in range(2):
        for e in range(2):
            for h in range(2):
                t = acc[2*p+h][4+e]
                P(f"v_cvt_pk_bf16_f32 {vf[p][e][2*h]}, {t[0]}, {t[1]}\nv_cvt_pk_bf16_f32 {vf[p][e][2*h+1]}, {t[2]}, {t[3]}")
        for d in range(2):
            for h in range(2): phi(acc[2*p+h][2+d], pkf[p][d].sub(2*h, 2))
            for e in (1, 0): P(f"{MF} {kvt[d][e]}, {pkf[p][d]}, {vf[p][e]}, {kvt[d][e] if p else 0}")
            P(f"{MF} {zt[d]}, {pkf[p][d]}, {ones}, {zt[d] if p else 0}")
    vXS, vXP, vPA, vZA = V(), V(), V(), V()
    P(f"""v_lshl_add_u32 {vXS}, {vL}, 4, {sXS}
    v_lshl_add_u32 {vXP}, {vL}, 4, {sXP}
    s_lshl_b32 {sT}, {sHD}, 1
    s_add_u32 {sT}, {sT}, {sWM}
    s_lshl_b32 {sT2}, {sT}, 14
    s_add_u32 {sT2}, {sT2}, {PART}
    v_lshl_add_u32 {vPA}, {vL}, 4, {sT2}
    s_lshl_b32 {sT}, {sT}, 4
    s_add_u32 {sT}, {sT}, {sMT}
    s_lshl_b32 {sT}, {sT}, 6
    s_add_u32 {sT}, {sT}, {ZP}
    v_add_u32 {vZA}, {sT}, {vL}
    s_lshl_b32 {sBase}, {sMT}, 10
    ds_write_b128 {vXS}, {kvt[0][1]}
    ds_write_b128 {vXS}, {kvt[1][1]} offset:1024""")
    zf = pkf[0][0]; pf = pkf[0][1]
    P(f"""v_cvt_pk_bf16_f32 {zf[0]}, {zt[0][0]}, {zt[0][1]}
    v_cvt_pk_bf16_f32 {zf[1]}, {zt[0][2]}, {zt[0][3]}
    v_cvt_pk_bf16_f32 {zf[2]}, {zt[1][0]}, {zt[1][1]}
    v_cvt_pk_bf16_f32 {zf[3]}, {zt[1][2]}, {zt[1][3]}
    s_mov_b32 {sEx[0]}, 0x00010001
    s_mov_b32 {sEx[1]}, 0x00010001
    s_waitcnt lgkmcnt(0)
    s_barrier
    ds_read_b128 {kvt[0][1]}, {vXP}
    ds_read_b128 {kvt[1][1]}, {vXP} offset:1024
    s_mov_b64 exec, {sEx}
    buffer_store_dwordx4 {zf}, {vZA}, {srdWS}, 0 offen sc1
    s_mov_b64 exec, -1""")
    for d in range(2):
        for j in range(4): P(f"v_add_f32 {kvt[d][0][j]}, {kvt[d][0][j]}, {kvt[d][1][j]}")
        P(f"v_cvt_pk_bf16_f32 {pf[2*d]}, {kvt[d][0][0]}, {kvt[d][0][1]}\nv_cvt_pk_bf16_f32 {pf[2*d+1]}, {kvt[d][0][2]}, {kvt[d][0][3]}")
    P(f"buffer_store_dwordx4 {pf}, {vPA}, {srdWS}, {sBase} offen sc1")
    stamp(P, 3)
    pq = [V(4) for _ in range(4)]
    for tt in range(2):
        for d in range(2): phi(acc[tt][d], pq[tt].sub(2*d, 2))
    P(f"""s_waitcnt vmcnt(0)
    s_mov_b64 exec, 1
    buffer_store_dword {vOne}, {vF1}, {srdWS}, 0 offen sc1
    s_mov_b64 exec, -1""")
    stamp(P, 4)
    for tt in range(2, 4):
        for d in range(2): phi(acc[tt][d], pq[tt].sub(2*d, 2))
    selr = V(6); vP1 = V()
    P(f"""v_and_b32 {vT}, 15, {vL}
    v_lshrrev_b32 {vT2}, 4, {vL}
    v_lshlrev_b32 {vT2}, 2, {vT2}
    v_sub_u32 {vT}, {vT}, {vT2}
    v_mov_b32 {selr[0]}, 0
    v_mov_b32 {selr[1]}, 0
    v_mov_b32 {selr[4]}, 0
    v_mov_b32 {selr[5]}, 0
    v_mov_b32 {tmp[0]}, 0x3f80
    v_mov_b32 {tmp[1]}, 0x3f800000
    v_cmp_eq_u32 vcc, 0, {vT}
    v_cndmask_b32 {selr[2]}, 0, {tmp[0]}, vcc
    v_cmp_eq_u32 vcc, 1, {vT}
    v_cndmask_b32 {selr[2]}, {selr[2]}, {tmp[1]}, vcc
    v_cmp_eq_u32 vcc, 2, {vT}
    v_cndmask_b32 {selr[3]}, 0, {tmp[0]}, vcc
    v_cmp_eq_u32 vcc, 3, {vT}
    v_cndmask_b32 {selr[3]}, {selr[3]}, {tmp[1]}, vcc
    s_lshl_b32 {sT}, {sHD}, 5
    v_and_b32 {vT}, 31, {vL}
    v_add_u32 {vT}, {sT}, {vT}
    v_mul_u32_u24 {vP1}, {FS}, {vT}
    v_add_u32 {vP1}, {F1}, {vP1}
    s_lshl_b32 {sT}, {sHD}, 11
    s_add_u32 {sT}, {sT}, {ZP}
    v_and_b32 {vT}, 15, {vL}
    v_lshl_add_u32 {vZA}, {vT}, 6, {sT}
    v_lshrrev_b32 {vT}, 4, {vL}
    v_lshl_add_u32 {vZA}, {vT}, 4, {vZA}""")
    poll_global(P, vP1, vT, 1, srdWS)
    stamp(P, 5)
    parts = [R('v', acc[0][0].idx + 4*i, 4) for i in range(16)]
    zl = [R('v', acc[0][0].idx + 64 + 4*i, 4) for i in range(2)]
    zs = R('v', acc[0][0].idx + 72, 8)
    for i in range(2): P(f"buffer_load_dwordx4 {zl[i]}, {vZA}, {srdWS}, 0 offen offset:{1024*i} sc1")
    for p in range(16):
        if p % 4 == 0: P(f"s_mov_b32 {sBase}, {p*1024}")
        P(f"buffer_load_dwordx4 {parts[p]}, {vPA}, {srdWS}, {sBase} offen offset:{(p%4)*1024} sc1")
    for d in range(4):
        P(f"""v_lshlrev_b32 {zs[2*d]}, 16, {zl[0][d]}
        v_and_b32 {zs[2*d+1]}, 0xffff0000, {zl[0][d]}
        v_lshlrev_b32 {tmp[0]}, 16, {zl[1][d]}
        v_and_b32 {tmp[1]}, 0xffff0000, {zl[1][d]}
        v_add_f32 {zs[2*d]}, {zs[2*d]}, {tmp[0]}
        v_add_f32 {zs[2*d+1]}, {zs[2*d+1]}, {tmp[1]}""")
    for sh in (8, 4, 2, 1):
        for j in range(8): P(f"v_add_f32_dpp {zs[j]}, {zs[j]}, {zs[j]} row_ror:{sh} row_mask:0xf bank_mask:0xf")
    zb = zt[0]
    for d in range(4): P(f"v_cvt_pk_bf16_f32 {zb[d]}, {zs[2*d]}, {zs[2*d+1]}")
    sm = [kvt[0][0], kvt[1][0]]
    for p in range(16):
        P(f"{MF} {sm[0]}, {selr.sub(2,4)}, {parts[p]}, {sm[0] if p else 0}")
        P(f"{MF} {sm[1]}, {selr.sub(0,4)}, {parts[p]}, {sm[1] if p else 0}")
    vS3, vS3F, vOA = V(), V(), V()
    P(f"""s_lshl_b32 {sT}, {sW}, 10
    s_add_u32 {sT}, {sT}, {S3B}
    v_lshl_add_u32 {vS3}, {vL}, 4, {sT}
    s_lshl_b32 {sT}, {sW}, 2
    s_add_u32 {sT}, {sT}, {S3F}
    v_mov_b32 {vS3F}, {sT}
    v_cvt_pk_bf16_f32 {pf[0]}, {sm[0][0]}, {sm[0][1]}
    v_cvt_pk_bf16_f32 {pf[1]}, {sm[0][2]}, {sm[0][3]}
    v_cvt_pk_bf16_f32 {pf[2]}, {sm[1][0]}, {sm[1][1]}
    v_cvt_pk_bf16_f32 {pf[3]}, {sm[1][2]}, {sm[1][3]}
    ds_write_b128 {vS3}, {pf}
    ds_write_b32 {vS3F}, {vOne}
    v_xor_b32 {vS3F}, 8, {vS3F}
    s_lshl_b32 {sT}, {sWN}, 10
    s_add_u32 {sT}, {sT}, {S3B}
    v_lshl_add_u32 {vS3}, {vL}, 4, {sT}
    s_lshl_b32 {sT}, {sMT}, 1
    s_add_u32 {sT}, {sT}, {sWM}
    s_lshl_b32 {sT}, {sT}, 7
    s_add_u32 {sT}, {sT}, {sHD}
    s_lshl_b32 {sT}, {sT}, 10
    s_add_u32 {sT}, {sT}, {OF}
    v_lshl_add_u32 {vOA}, {vL}, 4, {sT}""")
    den = [R('v', acc[0][0].idx + 4*i, 4) for i in range(4)]
    for tt in range(4): P(f"{MF} {den[tt]}, {zb}, {pq[tt]}, 0")
    kf = [vf[0][0], vf[0][1]]
    l0, l1 = lab("s3"), lab("s3d")
    P(f"s_mov_b32 {sCnt}, 0")
    P.loop_begin(l0)
    P(f"""ds_read_b32 {vT}, {vS3F}
    ds_read_b128 {kf[0]}, {vS3}
    ds_read_b128 {kf[1]}, {vS3} offset:2048
    s_add_u32 {sCnt}, {sCnt}, 1
    s_cmp_gt_u32 {sCnt}, {SPIN_L}
    s_waitcnt lgkmcnt(0)
    s_cbranch_scc1 {l1}
    v_cmp_ne_u32 vcc, 1, {vT}
    s_cbranch_vccnz {l0}""")
    P.loop_end()
    P(f"{l1}:")
    num = [[R('v', acc[0][0].idx + 16 + 8*tt + 4*e, 4) for e in range(2)] for tt in range(4)]
    for tt in range(4):
        for e in range(2): P(f"{MF} {num[tt][e]}, {kf[e]}, {pq[tt]}, 0")
    for tt in range(4): P(f"v_add_f32 {den[tt][0]}, {sEps}, {den[tt][0]}")
    for tt in range(4): P(f"v_rcp_f32 {den[tt][0]}, {den[tt][0]}")
    for tt in range(4):
        for e in range(2):
            for j in range(4): P(f"v_mul_f32 {num[tt][e][j]}, {num[tt][e][j]}, {den[tt][0]}")
        of = pq[tt]
        for e in range(2):
            P(f"v_cvt_pk_bf16_f32 {of[2*e]}, {num[tt][e][0]}, {num[tt][e][1]}\nv_cvt_pk_bf16_f32 {of[2*e+1]}, {num[tt][e][2]}, {num[tt][e][3]}")
        P(f"s_mov_b32 {sBase}, {tt*32768}\nbuffer_store_dwordx4 {of}, {vOA}, {srdWS}, {sBase} offen sc1")
    stamp(P, 6)
    V.reset(vRA[0].idx)
    vWB = [V() for _ in range(4)]; vOL, vP2, vGA, vLFa = V(), V(), V(), V()
    vAR = [V(), V()]; gv = V(2); om = V(2); lf = V(4)
    wf = [[V(4) for _ in range(4)] for _ in range(2)]
    cc = [[V(4) for _ in range(4)] for _ in range(2)]
    RING = o['ring']
    keep_lo = pq[0].idx
    ring = [V(4) for _ in range(RING)]
    assert V.next <= keep_lo, (V.next, keep_lo)
    P(f"""v_lshrrev_b32 {vT}, 2, {vL}
    v_lshlrev_b32 {vWB[0]}, 7, {vT}
    v_bfe_u32 {vT}, {vL}, 3, 2
    v_lshl_add_u32 {vWB[0]}, {vT}, 5, {vWB[0]}
    v_and_b32 {vT}, 3, {vL}
    v_lshl_add_u32 {vWB[0]}, {vT}, 3, {vWB[0]}
    v_add_u32 {vWB[0]}, {wo_addr(0)}, {vWB[0]}
    v_xor_b32 {vWB[1]}, 32, {vWB[0]}
    v_xor_b32 {vWB[2]}, 64, {vWB[0]}
    v_xor_b32 {vWB[3]}, 96, {vWB[0]}
    s_lshl_b32 {sT}, {sMT2}, 2
    s_add_u32 {sT}, {sT}, {sW}
    s_lshl_b32 {sT2}, {sT}, 16
    s_add_u32 {sT2}, {sT2}, {OF}
    v_lshl_add_u32 {vOL}, {vL}, 4, {sT2}
    s_lshl_b32 {sT2}, {sT}, 7
    s_add_u32 {sT2}, {sT2}, {GG}
    v_and_b32 {vT}, 15, {vL}
    v_lshl_add_u32 {vGA}, {vT}, 2, {sT2}
    s_lshr_b32 {sT}, {sT}, 1
    s_lshl_b32 {sT}, {sT}, 5
    v_and_b32 {vT}, 31, {vL}
    v_add_u32 {vT}, {sT}, {vT}
    v_mul_u32_u24 {vP2}, {FS}, {vT}
    v_add_u32 {vP2}, {F2}, {vP2}
    v_mov_b32 {vLFa}, {LF}
    v_lshrrev_b32 {vT}, 2, {vL}
    v_lshlrev_b32 {vAR[0]}, 8, {vT}
    v_and_b32 {vT}, 7, {vT}
    s_lshl_b32 {sT}, {sW}, 1
    v_xor_b32 {vT}, {sT}, {vT}
    v_lshl_add_u32 {vAR[0]}, {vT}, 4, {vAR[0]}
    v_bfe_u32 {vT}, {vL}, 1, 1
    v_lshl_add_u32 {vAR[0]}, {vT}, 7, {vAR[0]}
    v_and_b32 {vT}, 1, {vL}
    v_lshl_add_u32 {vAR[0]}, {vT}, 3, {vAR[0]}
    v_add_u32 {vAR[0]}, {U0 + 512}, {vAR[0]}
    v_xor_b32 {vAR[1]}, 16, {vAR[0]}""")
    def wait_lf(level):
        l0, l1 = lab("lf"), lab("lfd")
        P(f"s_mov_b32 {sCnt}, 0")
        P.loop_begin(l0)
        P(f"""ds_read_b128 {lf}, {vLFa}
        s_add_u32 {sCnt}, {sCnt}, 1
        s_cmp_gt_u32 {sCnt}, {SPIN_L}
        s_waitcnt lgkmcnt(0)
        s_cbranch_scc1 {l1}
        v_min_u32 {lf[0]}, {lf[0]}, {lf[1]}
        v_min3_u32 {lf[0]}, {lf[0]}, {lf[2]}, {lf[3]}
        v_cmp_gt_u32 vcc, {level}, {lf[0]}
        s_cbranch_vccnz {l0}""")
        P.loop_end()
        P(f"{l1}:")
    P(f"""s_waitcnt vmcnt(0)
    s_mov_b64 exec, 1
    buffer_store_dword {vOne}, {vF2}, {srdWS}, 0 offen sc1
    s_mov_b64 exec, -1""")
    stamp(P, 7)
    wait_lf(1)
    def wreads(ks):
        kt, hh = ks >> 1, ks & 1
        base = wo_addr(0) if kt < 7 else (wo_addr(7) if kt < 12 else wo_addr(12))
        out = []
        for c in range(4):
            for t in range(2):
                out.append(L(f"ds_read_b64_tr_b16 {wf[ks&1][c].sub(2*t,2)}, {vWB[c]} offset:{wo_addr(kt) - base + hh*4096 + t*2048}"))
        return out
    for g in wreads(0): P.extend(g)
    poll_global(P, vP2, vT, 1, srdWS)
    stamp(P, 8)
    sO = [S(), S()]
    def oload(j):
        ks, tt = j >> 1, j & 1
        pre = f"s_mov_b32 {sO[tt]}, {tt*32768 + (ks & ~3)*1024}\n" if ks % 4 == 0 else ""
        return L(pre + f"buffer_load_dwordx4 {ring[j % RING]}, {vOL}, {srdWS}, {sO[tt]} offen offset:{(ks&3)*1024} sc1")
    for j in range(RING): P.extend(oload(j))
    for ks in range(32):
        m = [L(f"{MF} {cc[tt][c]}, {wf[ks&1][c]}, {ring[(2*ks+tt) % RING]}, {cc[tt][c] if ks else 0}") for tt in range(2) for c in range(4)]
        if ks + 1 in (14, 24):
            delta = wo_addr(7) - wo_addr(0) if ks + 1 == 14 else wo_addr(12) - wo_addr(7)
            for r in vWB: P(f"v_add_u32 {r}, {delta & 0xffffffff}, {r}")
        if ks + 1 == 24: wait_lf(2)
        if ks == 24: P(f"buffer_load_dword {gv[0]}, {vGA}, {srdWS}, 0 offen sc1\nbuffer_load_dword {gv[1]}, {vGA}, {srdWS}, 0 offen offset:64 sc1")
        rd = wreads(ks + 1) if ks < 31 else []
        for half in range(2):
            P.extend(merge(m[4*half:4*half+4], rd[4*half:4*half+4]))
            if 2*ks + half + RING < 64: P.extend(oload(2*ks + half + RING))
    stamp(P, 9)
    wait_lf(3)
    af = [[ring[2*tt + (c >> 1)].sub(2*(c & 1), 2) for c in range(4)] for tt in range(2)]
    for tt in range(2):
        for c in range(4): P(f"ds_read_b64_tr_b16 {af[tt][c]}, {vAR[tt]} offset:{c*USZ}")
    for tt in range(2):
        P(f"v_sub_f32 {om[tt]}, 1.0, {gv[tt]}"); bf16r(P, om[tt], om[tt])
    vOut = vOL
    P(f"""s_lshl_b32 {sT}, {sMT2}, 2
    s_add_u32 {sT}, {sT}, {sW}
    s_lshl_b32 {sT}, {sT}, 16
    s_lshl_b32 {sT2}, {sCT}, 7
    s_add_u32 {sT}, {sT}, {sT2}
    v_and_b32 {vT}, 15, {vL}
    v_lshl_add_u32 {vOut}, {vT}, 11, {sT}
    v_bfe_u32 {vT}, {vL}, 4, 1
    v_lshl_add_u32 {vOut}, {vT}, 5, {vOut}
    v_lshrrev_b32 {vT}, 5, {vL}
    v_lshl_add_u32 {vOut}, {vT}, 4, {vOut}""")
    tq = ring[4]
    for tt in range(2):
        for cp in range(2):
            d = ring[6 + 2*tt + cp]
            for q in range(2):
                c = 2*cp + q; t = cc[tt][c]; a2 = af[tt][c]
                P(f"""v_lshlrev_b32 {tq[0]}, 16, {a2[0]}
                v_and_b32 {tq[1]}, 0xffff0000, {a2[0]}
                v_lshlrev_b32 {tq[2]}, 16, {a2[1]}
                v_and_b32 {tq[3]}, 0xffff0000, {a2[1]}""")
                for j in range(4): P(f"v_mul_f32 {t[j]}, {om[tt]}, {t[j]}")
                for j in range(4): P(f"v_fmac_f32 {t[j]}, {gv[tt]}, {tq[j]}")
                P(f"v_cvt_pk_bf16_f32 {d[2*q]}, {t[0]}, {t[1]}\nv_cvt_pk_bf16_f32 {d[2*q+1]}, {t[2]}, {t[3]}")
            P(f"""v_permlane16_swap_b32 {d[0]}, {d[2]}
            v_permlane16_swap_b32 {d[1]}, {d[3]}
            s_mov_b32 {sBase}, {tt*32768}
            buffer_store_dwordx4 {d}, {vOut}, {srdOUT}, {sBase} offen offset:{64*cp}""")
    stamp(P, 10)
    if stamps:
        P("s_waitcnt vmcnt(0)"); stamp(P, 11)
    dump_stamps(P, vT, lf, 0)
    P("L_end:\ns_endpgm\nL_codeend:")
    compute, vhiC, shiC = P, V.hi, S.hi

    hdr = open("gated_mix__ssm_conv_s4d__linear_attn_block__prompt.s.ref").read().split("; Override")[0] if o.get('hdr') else ""
    out = [hdr + "; @launch grid=(256,1,1) block=(512,1,1) lds=163840",
           '.amdgcn_target "amdgcn-amd-amdhsa--gfx950"', ".text", f".globl {KNAME}", ".p2align 8", f".type {KNAME},@function", f"{KNAME}:"]
    out += E.finalize() + loader.finalize() + OOL.finalize() + compute.finalize()
    out += ['.section .rodata,"a"', kernel_desc(KNAME, 256, 0, 102)]
    info = dict(vL=vhiL, vC=vhiC, sL=shiL, sC=shiC, nside=len(side))
    return "\n".join(out), info

if __name__ == "__main__":
    txt, info = gen(stamps=len(sys.argv) > 2, opts=dict(hdr=True))
    open(sys.argv[1], "w").write(txt)
    print(info)
```

```python
import sys, math
from asm import R, v, s, Alloc, kernel_desc
from prog import Prog, I, L, merge

KNAME = "gated_mix__ssm_conv_s4d__linear_attn_block__prompt_kernel"
MB = 1 << 20
UT, AT, OF, PART, ZP, GG = 0, 4*MB, 8*MB, 12*MB, 13*MB, 13*MB + 512*1024
F1, F2, F3 = 14*MB, 14*MB + 256*1024, 14*MB + 512*1024
FS = 64
STAMP_OFF = 200 << 20
ASZ, BSZ = 16384, 24576
SSZ = ASZ + BSZ
U0, USZ = 40960, 4608
KB0, KSZ = 122880, 8704
XS012, XS3, S3B = 75776, 157696, 159744
LF, S3F = U0, U0 + 16
def wo_addr(kt):
    if kt < 2: return 59392 + 8192*kt
    if kt < 7: return 81920 + 8192*(kt-2)
    if kt < 12: return 8192*(kt-7)
    return KB0 + KSZ*(kt-12)
LOG2E = 0x3fb8aa3b
INV2PI = 0x3e22f983
SPIN_G, SPIN_L = 40000, 400000
MF = "v_mfma_f32_16x16x32_bf16"

def gen(stamps=False, opts=None):
    o = dict(ring=16, prio=1, codepf=True)
    o.update(opts or {})
    S = Alloc('s', 3, 102)
    sW = S()
    kp = R('s', 4, 16); kq = R('s', 20, 8); kr = R('s', 28, 4); S.next = 32
    pX, pLA, pAI, pCR, pCI, pLDT, pDS = [kp.sub(2*i, 2) for i in range(7)]
    pWQ, pWO, pGW, pOUT = [kq.sub(2*i, 2) for i in range(4)]
    pDBG, pWS = kr.sub(0, 2), kr.sub(2, 2)
    srdWS = S(4)
    sMT, sHP, sMT2, sCT, sT, sT2, sT3, sCnt = [S() for _ in range(8)]
    sEx = S(2)
    st = [S(2)] if stamps else None
    smark = S.mark()
    def alloc_stamps(n):
        if stamps:
            del st[1:]
            st.extend(S(2) for _ in range(n - 1))
    def stamp(P, i):
        if stamps: P(f"s_memrealtime {st[i]}")
    def dump_stamps(P, vT, d, role):
        if not stamps: return
        if o.get('dbgst'):
            if role == 1: return
            P(f"s_waitcnt vmcnt(0) lgkmcnt(0)\ns_mov_b64 exec, 1\nv_mov_b32 {vT}, 0\ns_not_b32 {st[0][1]}, {st[0][0]}")
            P(f"v_mov_b32 {d[0]}, {st[0][1]}\nglobal_atomic_umax {vT}, {d[0]}, {pDBG} offset:4 sc1\ns_nop 1")
            for i in range(len(st)):
                P(f"v_mov_b32 {d[0]}, {st[i][0]}\nglobal_atomic_umax {vT}, {d[0]}, {pDBG} offset:{8+4*i} sc1\ns_nop 1")
            return
        P(f"""s_waitcnt vmcnt(0) lgkmcnt(0)
        s_lshl_b32 {sT}, s2, 3
        s_add_u32 {sT}, {sT}, {sW}
        s_lshl_b32 {sT}, {sT}, 7
        s_add_u32 {sT}, {sT}, {STAMP_OFF}
        v_mov_b32 {vT}, {sT}
        s_mov_b64 exec, 1""")
        for i in range(len(st)):
            P(f"""v_mov_b32 {d[0]}, {st[i][0]}
            v_mov_b32 {d[1]}, {st[i][1]}
            buffer_store_dwordx2 {d.sub(0,2)}, {vT}, {srdWS}, 0 offen offset:{8*i}
            s_nop 1""")
    def srd(P, r, p, size):
        P(f"s_mov_b32 {r[0]}, {p[0]}\ns_mov_b32 {r[1]}, {p[1]}\ns_mov_b32 {r[2]}, {size}\ns_mov_b32 {r[3]}, 0x20000")
    uid = [0]
    def lab(n): uid[0] += 1; return f"L_{n}_{uid[0]}"
    def poll_global(P, vaddr, vtmp, want, srdr, cmp='ne'):
        l0, l1 = lab("poll"), lab("polld")
        P(f"s_mov_b32 {sCnt}, 0")
        P.loop_begin(l0)
        P(f"""buffer_load_dword {vtmp}, {vaddr}, {srdr}, 0 offen sc1
        s_add_u32 {sCnt}, {sCnt}, 1
        s_cmp_gt_u32 {sCnt}, {SPIN_G}
        s_waitcnt vmcnt(0)
        s_cbranch_scc1 {l1}
        v_cmp_{cmp}_u32 vcc, {want}, {vtmp}
        s_cbranch_vccnz {l0}""")
        P.loop_end()
        P(f"{l1}:")
    def bf16r(P, dst, src):
        P(f"v_cvt_pk_bf16_f32 {dst}, {src}, {src}\nv_lshlrev_b32 {dst}, 16, {dst}")

    E = Prog()
    E(f"""s_cmp_ge_u32 s2, 256
    s_cbranch_scc1 L_end
    s_load_dwordx16 {kp}, s[0:1], 0
    s_load_dwordx8 {kq}, s[0:1], 64
    s_load_dwordx4 {kr}, s[0:1], 96""")
    stamp(E, 0)
    E(f"""v_lshrrev_b32 v1, 6, v0
    v_and_b32 v0, 63, v0
    s_and_b32 {sT}, s2, 7
    v_readfirstlane_b32 {sW}, v1
    s_lshr_b32 {sT2}, s2, 3
    s_and_b32 {sMT}, {sT}, 1
    s_lshl_b32 {sMT}, {sMT}, 3
    s_and_b32 {sT3}, {sT2}, 7
    s_add_u32 {sMT}, {sMT}, {sT3}
    s_lshr_b32 {sHP}, {sT}, 1
    s_lshl_b32 {sHP}, {sHP}, 2
    s_lshr_b32 {sT3}, {sT2}, 3
    s_add_u32 {sHP}, {sHP}, {sT3}
    s_and_b32 {sMT2}, {sT}, 3
    s_lshl_b32 {sMT2}, {sMT2}, 2
    s_and_b32 {sT3}, {sT2}, 3
    s_add_u32 {sMT2}, {sMT2}, {sT3}
    s_lshr_b32 {sCT}, {sT}, 2
    s_lshl_b32 {sCT}, {sCT}, 3
    s_lshr_b32 {sT3}, {sT2}, 2
    s_add_u32 {sCT}, {sCT}, {sT3}
    s_cmp_lt_u32 {sW}, 4
    s_cbranch_scc1 L_compute""")
    vL = v(0)

    P = Prog()
    S.reset(smark); V = Alloc('v', 1, 256)
    srdX, srdW, srdWO, srdXT, srdUT = S(4), S(4), S(4), S(4), S(4)
    sLW, sM0A, sM0B, sCH, sKB, sUB, sBase = [S() for _ in range(7)]
    soA = [S() for _ in range(4)]; soB = [S() for _ in range(6)]
    sPlo = S()
    alloc_stamps(8)
    vT, vT2 = V(), V()
    vAo = [V(), V()]; vBo = [V(), V()]
    P(f"""s_sub_u32 {sLW}, {sW}, 4
    v_lshrrev_b32 {vT}, 3, {vL}
    v_lshlrev_b32 {vAo[0]}, 11, {vT}
    v_mul_u32_u24 {vBo[0]}, 6144, {vT}
    v_lshrrev_b32 {vT}, 4, {vL}
    v_and_b32 {vT2}, 7, {vL}
    v_xor_b32 {vT2}, {vT2}, {vT}
    v_lshl_add_u32 {vAo[0]}, {vT2}, 4, {vAo[0]}
    v_and_b32 {vT}, 1, {vT}
    v_lshlrev_b32 {vT}, 1, {vT}
    v_and_b32 {vT2}, 7, {vL}
    v_xor_b32 {vT2}, {vT2}, {vT}
    v_lshl_add_u32 {vBo[0]}, {vT2}, 4, {vBo[0]}
    s_lshl_b32 {sT}, {sMT}, 18
    s_lshl_b32 {sT2}, {sLW}, 16
    s_add_u32 {sT}, {sT}, {sT2}
    v_add_u32 {vAo[0]}, {sT}, {vAo[0]}
    v_xor_b32 {vAo[1]}, 64, {vAo[0]}
    s_lshl_b32 {sT}, {sHP}, 7
    s_mul_i32 {sT2}, {sLW}, {2*8*6144}
    s_add_u32 {sT}, {sT}, {sT2}
    v_add_u32 {vBo[0]}, {sT}, {vBo[0]}
    v_xor_b32 {vBo[1]}, 64, {vBo[0]}
    s_lshl_b32 {sM0A}, {sLW}, 12
    s_lshl_b32 {sM0B}, {sLW}, 11
    s_add_u32 {sM0B}, {sM0B}, {ASZ}""")
    for i in range(4): P(f"s_mov_b32 {soA[i]}, {16384*i - 1024*i}")
    for i in range(6): P(f"s_mov_b32 {soB[i]}, {(i>>1)*2048 + (i&1)*(8*6144 - 1024)}")
    P("s_waitcnt lgkmcnt(0)")
    srd(P, srdX, pX, 4*MB); srd(P, srdW, pWQ, 6*MB)
    def dma_tile(t):
        base = (t % 3) * SSZ; tag = f"t{t}"
        g = []
        for i in range(4):
            pre = L(f"s_add_u32 m0, {sM0A}, {base}") if i == 0 else []
            g.append(pre + L(f"buffer_load_dwordx4 {vAo[i&1]}, {srdX}, {soA[i]} offen offset:{1024*i} lds", tag))
        for i in range(6):
            pre = L(f"s_add_u32 m0, {sM0B}, {base + (i>>1)*8192}") if (i & 1) == 0 else []
            g.append(pre + L(f"buffer_load_dwordx4 {vBo[i&1]}, {srdW}, {soB[i]} offen offset:{1024*(i&1)} lds", tag))
        g[-1] = g[-1] + L(f"""s_add_u32 {srdX[0]}, {srdX[0]}, 128
        s_addc_u32 {srdX[1]}, {srdX[1]}, 0
        s_add_u32 {srdW[0]}, {srdW[0]}, {64*6144}
        s_addc_u32 {srdW[1]}, {srdW[1]}, 0""")
        return g
    for t in range(2):
        for g in dma_tile(t): P.extend(g)
    srd(P, srdWS, pWS, 0x10000000); srd(P, srdWO, pWO, 2*MB)
    srd(P, srdXT, pX, 4*MB); srd(P, srdUT, pWS, 4*MB)
    vPar = V(4); vLdt, vDsk = V(), V()
    xr = V(32); xo = V(32)
    vUA = V()
    P(f"""s_cmp_lt_u32 {sLW}, 2
    s_cselect_b32 {srdXT[2]}, {srdXT[2]}, 0
    s_cselect_b32 {srdUT[2]}, {srdUT[2]}, 0
    s_lshr_b32 {sT}, s2, 3
    s_lshl_b32 {sT}, {sT}, 5
    s_lshl_b32 {sT2}, {sLW}, 3
    s_add_u32 {sT}, {sT}, {sT2}
    s_and_b32 {sT2}, s2, 7
    s_add_u32 {sCH}, {sT}, {sT2}
    s_mul_i32 {sKB}, {sLW}, {KSZ}
    s_add_u32 {sKB}, {sKB}, {KB0}
    s_mul_i32 {sUB}, {sLW}, {USZ}
    s_add_u32 {sUB}, {sUB}, {U0}
    s_lshl_b32 {sT}, {sCH}, 8
    v_lshl_add_u32 {vT}, {vL}, 2, {sT}
    global_load_dword {vPar[0]}, {vT}, {pLA}
    global_load_dword {vPar[1]}, {vT}, {pAI}
    global_load_dword {vPar[2]}, {vT}, {pCR}
    global_load_dword {vPar[3]}, {vT}, {pCI}
    s_lshl_b32 {sT}, {sCH}, 1
    v_mov_b32 {vT}, {sT}
    global_load_ushort {vLdt}, {vT}, {pLDT}
    global_load_ushort {vDsk}, {vT}, {pDS}""")
    P(f"""s_and_b32 {sT}, {sLW}, 1
    s_lshl_b32 {sT}, {sT}, 17
    s_lshl_b32 {sT2}, {sMT}, 18
    s_add_u32 {sT}, {sT}, {sT2}
    s_lshl_b32 {sT2}, {sHP}, 7
    s_add_u32 {sT}, {sT}, {sT2}
    v_lshrrev_b32 {vT}, 3, {vL}
    v_lshlrev_b32 {vT}, 14, {vT}
    v_and_b32 {vT2}, 7, {vL}
    v_lshl_add_u32 {vT}, {vT2}, 4, {vT}
    v_add_u32 {vT}, {sT}, {vT}""")
    for i in range(8):
        if i % 2 == 0: P(f"s_mov_b32 {sT}, {i*2048}")
        P(f"buffer_load_dwordx4 {xr.sub(4*i,4)}, {vT}, {srdXT}, {sT} offen offset:{(i&1)*2048}")
    vF3, vZero = V(), V()
    P(f"""s_mul_i32 {sT}, {sCH}, {FS}
    s_add_u32 {sT}, {sT}, {F3}
    v_mov_b32 {vF3}, {sT}
    v_mov_b32 {vZero}, 0
    s_mov_b64 exec, 1
    buffer_store_dword {vZero}, {vF3}, {srdWS}, 0 offen sc1
    s_mov_b64 exec, -1""", "early")
    P(f"""s_lshl_b32 {sT}, {sHP}, 18
    s_lshl_b32 {sT2}, {sMT}, 10
    s_add_u32 {sT}, {sT}, {sT2}
    s_and_b32 {sT2}, {sLW}, 1
    s_lshl_b32 {sT2}, {sT2}, 9
    s_add_u32 {sT}, {sT}, {sT2}
    v_bfe_u32 {vT}, {vL}, 2, 1
    v_lshlrev_b32 {vUA}, 17, {vT}
    v_lshrrev_b32 {vT}, 3, {vL}
    v_lshl_add_u32 {vUA}, {vT}, 6, {vUA}
    v_and_b32 {vT}, 3, {vL}
    v_lshl_add_u32 {vUA}, {vT}, 4, {vUA}
    v_add_u32 {vUA}, {sT}, {vUA}""")
    P("@waitvm t0\ns_barrier")
    stamp(P, 1)

    side = []
    def G(txt, tag=None): side.extend([[x] for x in L(txt, tag)])
    def GA(txt, tag=None): side.append(L(txt, tag))
    sPhi = S()
    G(f"s_mov_b32 {sPlo}, 0x05040100\ns_mov_b32 {sPhi}, 0x07060302")
    for jj in range(8):
        for q in range(4):
            G(f"v_perm_b32 {xo[4*jj+q]}, {xr[4*(2*q+1) + (jj>>1)]}, {xr[4*(2*q) + (jj>>1)]}, {sPhi if jj & 1 else sPlo}")
        GA(f"s_mov_b32 {sBase}, {jj*16384}\nbuffer_store_dwordx4 {xo.sub(4*jj,4)}, {vUA}, {srdUT}, {sBase} offen sc1", "early")
    n_early = len(side)
    vE = V()
    kmark = V.mark()
    vKW, vKR, vDt = V(), V(), V()
    al, be, cr, ci, ta, tb_ = [V() for _ in range(6)]
    W = {p: (V(), V(), V()) for p in (1, 2, 4, 8, 256)}
    xa, xb, xc, xd = (V(), V()), (V(), V()), (V(), V()), (V(), V())
    pk = [V() for _ in range(4)]
    ff = xr; fe = xo
    kacc = V(16)
    G(f"""v_lshl_add_u32 {vKW}, {vL}, 2, {sKB}
    v_and_b32 {ta}, 31, {vL}
    v_mul_u32_u24 {vKR}, 272, {ta}
    v_lshrrev_b32 {ta}, 5, {vL}
    v_lshl_add_u32 {vKR}, {ta}, 4, {vKR}
    v_add_u32 {vKR}, {sKB}, {vKR}
    v_lshlrev_b32 {vDt}, 16, {vLdt}
    v_mul_f32 {vDt}, {LOG2E}, {vDt}
    v_exp_f32 {vDt}, {vDt}
    v_lshlrev_b32 {vDsk}, 16, {vDsk}
    v_cvt_pk_bf16_f32 {vDt}, {vDt}, {vDt}
    v_lshlrev_b32 {vDt}, 16, {vDt}""")
    pki = [0]
    def put(row_list, x, neg):
        r = pk[pki[0] % 4]; pki[0] += 1
        G(f"v_cvt_pk_bf16_f32 {r}, {x[0]}, {'-' if neg else ''}{x[1]}")
        for row in row_list: G(f"ds_write_b32 {vKW}, {r} offset:{row*272}")
    def cmul(y, x, w):
        G(f"""v_mul_f32 {y[0]}, {x[1]}, {w[2]}
        v_mul_f32 {y[1]}, {x[1]}, {w[0]}
        v_fmac_f32 {y[0]}, {x[0]}, {w[0]}
        v_fmac_f32 {y[1]}, {x[0]}, {w[1]}""")
    rho = lambda r, h: 8*(r >> 2) + 4*h + (r & 3)
    rows = {}
    def addrow(hi, r, h): rows.setdefault(hi, []).append(rho(r, h))
    for r in range(9): addrow(r, r, 0)
    for r, off in enumerate([0, 0, 2, 4, 4, 4, 6, 8, 8]): addrow(256 + off, r, 1)
    for h in range(2):
        for k in range(3): addrow(512 + 256*h + 4*k, 9 + k, h)
        for k in range(2): addrow(1024 + 256*h + 8*k, 12 + k, h); addrow(1536 + 256*h + 8*k, 14 + k, h)
    assert sorted(x for l in rows.values() for x in l) == list(range(32))
    for st_ in range(2):
        unp = (lambda d, x: f"v_lshlrev_b32 {d}, 16, {x}") if st_ == 0 else (lambda d, x: f"v_and_b32 {d}, 0xffff0000, {x}")
        G(f"""{unp(al, vPar[0])}
        v_mul_f32 {al}, {LOG2E}, {al}
        v_exp_f32 {al}, {al}
        {unp(be, vPar[1])}
        {unp(cr, vPar[2])}
        v_cvt_pk_bf16_f32 {al}, {al}, {al}
        {unp(ci, vPar[3])}
        v_lshlrev_b32 {al}, 16, {al}
        v_mul_f32 {al}, {al}, {vDt}
        v_mul_f32 {be}, {be}, {vDt}
        v_mul_f32 {cr}, {cr}, {vDt}
        v_mul_f32 {ci}, {ci}, {vDt}
        v_mul_f32 {al}, {LOG2E ^ 0x80000000}, {al}
        v_mul_f32 {be}, {INV2PI}, {be}
        v_add_f32 {cr}, {cr}, {cr}
        v_add_f32 {ci}, {ci}, {ci}""")
        import struct
        f2u = lambda x: struct.unpack('<I', struct.pack('<f', x))[0]
        for p in (8, 1, 256):
            w = W[p]
            G(f"""v_mul_f32 {ta}, {f2u(float(p))}, {al}
            v_mul_f32 {tb_}, {f2u(float(p))}, {be}
            v_exp_f32 {ta}, {ta}
            v_fract_f32 {tb_}, {tb_}
            v_cos_f32 {w[0]}, {tb_}
            v_sin_f32 {w[1]}, {tb_}
            v_mul_f32 {w[0]}, {ta}, {w[0]}
            v_mul_f32 {w[1]}, {ta}, {w[1]}
            v_sub_f32 {w[2]}, 0, {w[1]}""")
        for p in (2, 4):
            cmul(W[p], W[p//2], W[p//2]); G(f"v_sub_f32 {W[p][2]}, 0, {W[p][1]}")
        r = pk[pki[0] % 4]; pki[0] += 1
        G(f"v_mov_b32 {r}, 0x3f80\nds_write_b32 {vKW}, {r} offset:0")
        put([1], W[8], False)
        cur = W[8]
        for j in range(2, 32):
            nx = xa if cur is not xa else xb
            cmul(nx, cur, W[8]); put([j], nx, False); cur = nx
        for ks in range(8): G(f"ds_read_b128 {ff.sub(4*ks,4)}, {vKR} offset:{32*ks}")
        base = (cr, ci); put(rows[0], base, True)
        def chain(b, hi0, step, n):
            cur = b
            for k in range(1, n):
                nx = xa if cur is not xa else xb
                cmul(nx, cur, W[step]); put(rows[hi0 + step*k], nx, True); cur = nx
        chain(base, 0, 1, 9)
        for q in range(1, 8):
            nb = xc if base is not xc else xd
            cmul(nb, base, W[256]); base = nb
            put(rows[256*q], base, True)
            if q == 1: chain(base, 256, 2, 5)
            elif q < 4: chain(base, 256*q, 4, 3)
            else: chain(base, 256*q, 8, 2)
        for ks in range(8): G(f"ds_read_b128 {fe.sub(4*ks,4)}, {vKR} offset:{32*ks}")
        for ks in range(8):
            c = "0" if (st_ == 0 and ks == 0) else str(kacc)
            G(f"v_mfma_f32_32x32x16_bf16 {kacc}, {fe.sub(4*ks,4)}, {ff.sub(4*ks,4)}, {c}")
    vKX = V(); e0, e1 = V(4), V(4); sel = [V(), V()]
    k = kacc
    G(f"""v_lshlrev_b32 {ta}, 4, {vL}
    v_sub_u32 {vKX}, {4080-3072}, {ta}
    v_add_u32 {vKX}, {sKB}, {vKX}
    v_cmp_eq_u32 vcc, 0, {vL}
    v_cndmask_b32 {ta}, 0, {vDsk}, vcc
    v_and_b32 {tb_}, 1, {vL}
    v_add_f32 {k[0]}, {k[0]}, {ta}
    v_cmp_eq_u32 vcc, 0, {tb_}
    v_cndmask_b32 {sel[0]}, {k[13]}, {k[12]}, vcc
    v_cndmask_b32 {sel[1]}, {k[15]}, {k[14]}, vcc""")
    seqs = [[k[i] for i in range(9)],
            [k[9]]*3 + [k[10]]*3 + [k[11]]*3,
            [k[12]]*4 + [sel[0]] + [k[13]]*4,
            [k[14]]*4 + [sel[1]] + [k[15]]*4]
    for Pi, q in enumerate(seqs):
        for d in range(4): G(f"v_cvt_pk_bf16_f32 {e0[d]}, {q[7-2*d]}, {q[6-2*d]}")
        G(f"ds_write_b128 {vKX}, {e0} offset:{3072 - 1024*Pi}")
        for d in range(4): G(f"v_cvt_pk_bf16_f32 {e1[d]}, {q[8-2*d]}, {q[7-2*d]}")
        G(f"ds_write_b128 {vKX}, {e1} offset:{4160 + 3072 - 1024*Pi}")
    G(f"""v_cvt_pk_bf16_f32 {ta}, {k[0]}, {vZero}
    v_cmp_eq_u32 vcc, 0, {vL}
    v_min_u32 {tb_}, 7, {vL}
    v_cndmask_b32 {ta}, 0, {ta}, vcc
    v_lshl_add_u32 {tb_}, {tb_}, 2, {sKB}
    ds_write_b32 {tb_}, {vZero} offset:4096
    ds_write_b32 {tb_}, {ta} offset:{4160+4096}""")
    NSL = 13
    cuts = [0] + [n_early + ((len(side) - n_early) * i) // (NSL - 1) for i in range(NSL)]
    for it in range(14):
        sl = side[cuts[it]:cuts[it+1]] if it < NSL else []
        if it == 12:
            P(f"s_mov_b32 {srdXT[2]}, 4\nbuffer_load_dword {vE}, {vZero}, {srdXT}, 0 offen sc1")
        P.extend(merge(dma_tile(it + 2), sl))
        if it == 2: P("@waitvm early")
        if it == 3:
            P(f"""s_cmp_eq_u32 {sLW}, 0
            s_cselect_b32 {sT}, 4, 0
            s_mov_b32 {srdXT[0]}, {pDBG[0]}
            s_mov_b32 {srdXT[1]}, {pDBG[1]}
            s_mov_b32 {srdXT[2]}, {sT}
            v_mov_b32 {vE}, 1
            s_mov_b64 exec, 1
            buffer_atomic_add {vE}, {vZero}, {srdXT}, 0 offen sc1
            s_mov_b64 exec, -1""")
        if it == 12:
            P(f"v_cmp_gt_u32 vcc, 256, {vE}\ns_cbranch_vccnz L_eslow\nL_eback:")
            OOL = Prog(); OOL("L_eslow:"); poll_global(OOL, vZero, vE, 256, srdXT, 'gt'); OOL("s_branch L_eback")
        P(f"@waitvm t{it+1}\ns_barrier")
    stamp(P, 2)
    V.reset(kmark)
    vUD, vWO, vWO2 = V(), V(), V()
    z4 = V(4)
    P(f"""s_lshl_b32 {sT}, s2, 14
    s_lshl_b32 {sT2}, {sLW}, 4
    s_add_u32 {sT}, {sT}, {sT2}
    v_lshl_add_u32 {vUD}, {vL}, 6, {sT}
    s_add_u32 m0, {sUB}, 512""")
    for i in range(4):
        P(f"s_mov_b32 {sBase}, {UT + 3072*i}")
        P(f"buffer_load_dwordx4 {vUD}, {srdWS}, {sBase} offen offset:{1024*i} sc1 lds", "uT")
    P(f"""v_lshrrev_b32 {vT}, 3, {vL}
    v_lshlrev_b32 {vWO2}, 11, {vT}
    v_lshrrev_b32 {vT}, 4, {vL}
    v_lshlrev_b32 {vT}, 1, {vT}
    v_and_b32 {vT2}, 7, {vL}
    v_xor_b32 {vT}, {vT}, {vT2}
    v_lshl_add_u32 {vWO2}, {vT}, 4, {vWO2}
    s_lshl_b32 {sT}, {sCT}, 7
    v_add_u32 {vWO2}, {sT}, {vWO2}
    s_lshl_b32 {sT}, {sLW}, 15
    v_add_u32 {vWO}, {sT}, {vWO2}
    s_lshl_b32 {sM0A}, {sLW}, 11""")
    def dma_wo(kt):
        P(f"""s_add_u32 m0, {sM0A}, {wo_addr(kt)}
        s_mov_b32 {sBase}, {kt*131072}
        buffer_load_dwordx4 {vWO}, {srdWO}, {sBase} offen lds
        s_mov_b32 {sBase}, {kt*131072 + 16384 - 1024}
        buffer_load_dwordx4 {vWO}, {srdWO}, {sBase} offen offset:1024 lds""", "wo")
    dma_wo(0); dma_wo(1)
    P(f"""v_lshl_add_u32 {vT}, {vL}, 3, {sUB}
    v_mov_b32 {z4[0]}, 0
    v_mov_b32 {z4[1]}, 0
    ds_write_b64 {vT}, {z4.sub(0,2)}""")
    P("@waitvm t15\n@waitlg\ns_barrier")
    for kt in range(2, 7): dma_wo(kt)
    vU = V(); vTA = [V() for _ in range(4)]; vLF = V(); vOne = V()
    P(f"""v_and_b32 {vT}, 15, {vL}
    v_lshrrev_b32 {vT2}, 4, {vL}
    v_lshlrev_b32 {vU}, 5, {vT}
    v_lshl_add_u32 {vU}, {vT2}, 4, {vU}
    s_add_u32 {sT}, {sUB}, 480
    v_add_u32 {vU}, {sT}, {vU}
    v_lshlrev_b32 {vTA[0]}, 4, {vT2}
    v_lshrrev_b32 {vT2}, 1, {vT}
    v_lshlrev_b32 {vT2}, 2, {vT2}
    v_sub_u32 {vTA[0]}, {vTA[0]}, {vT2}
    v_and_b32 {vT}, 1, {vT}
    v_xor_b32 {vT}, 1, {vT}
    v_mul_u32_u24 {vT}, {4160+4}, {vT}
    v_add_u32 {vTA[0]}, {vTA[0]}, {vT}
    s_add_u32 {sT}, {sKB}, {4*(1015-128)}
    v_add_u32 {vTA[0]}, {sT}, {vTA[0]}
    v_subrev_u32 {vTA[1]}, 1024, {vTA[0]}
    v_subrev_u32 {vTA[2]}, 2048, {vTA[0]}
    v_subrev_u32 {vTA[3]}, 3072, {vTA[0]}
    s_lshl_b32 {sT}, {sLW}, 2
    s_add_u32 {sT}, {sT}, {LF}
    v_mov_b32 {vLF}, {sT}
    v_mov_b32 {vOne}, 1
    s_barrier""")
    for kt in range(7, 12): dma_wo(kt)
    tf = [[V(4) for _ in range(8)], [xr.sub(4*i, 4) for i in range(8)]]
    uf = [[V(4) for _ in range(8)], [xo.sub(4*i, 4) for i in range(8)]]
    cacc = [V(4) for _ in range(8)]
    def creads(b):
        out = []
        for i in range(8):
            off = 0 if i & 1 else 128
            out.append(L(f"ds_read_b128 {uf[b][i]}, {vU} offset:{512*i}"))
            out.append(L(f"ds_read2_b32 {tf[b][i].sub(0,2)}, {vTA[i>>1]} offset0:{off} offset1:{off+1}"))
            out.append(L(f"ds_read2_b32 {tf[b][i].sub(2,2)}, {vTA[i>>1]} offset0:{off+2} offset1:{off+3}"))
        out.append(L("\n".join(f"v_subrev_u32 {r}, 64, {r}" for r in [vU] + vTA)))
        return out
    def cmf(b):
        prs = sorted([(i, j) for i in range(8) for j in range(8) if i + j <= 7], key=lambda p: (max(p), p))
        return [L(f"{MF} {cacc[i+j]}, {tf[b][i]}, {uf[b][j]}, {cacc[i+j]}") for i, j in prs]
    for c in cacc:
        for r in range(4): P(f"v_mov_b32 {c[r]}, 0")
    P("@waitvm uT")
    for g in creads(0): P.extend(g)
    P("s_barrier")
    stamp(P, 3)
    P(f"s_mov_b32 {sCnt}, 0")
    P.loop_begin("L_conv")
    for b in range(2):
        m = cmf(b); rd = creads(b ^ 1)
        P.extend(merge(m[:28], rd) + [x for g in m[28:] for x in g])
    P(f"""s_waitcnt vmcnt(0)
    ds_write_b32 {vLF}, {vOne}
    s_add_u32 {sCnt}, {sCnt}, 1
    s_cmp_lt_u32 {sCnt}, 4
    s_cbranch_scc1 L_conv""")
    P.loop_end()
    stamp(P, 4)
    P(f"""@waitlg
    s_add_u32 {sT}, {sLW}, 12
    s_lshl_b32 {sT}, {sT}, 17""")
    for j in range(8):
        if j % 4 == 0: P(f"s_add_u32 m0, {sKB}, {j*1024}")
        P(f"s_add_u32 {sBase}, {sT}, {j*16384 - (j%4)*1024}")
        P(f"buffer_load_dwordx4 {vWO2}, {srdWO}, {sBase} offen offset:{(j%4)*1024} lds", "wol")
    P(f"""v_and_b32 {vT}, 15, {vL}
    v_lshlrev_b32 {vT}, 4, {vT}
    v_bfe_u32 {vT2}, {vL}, 4, 1
    v_lshl_add_u32 {vT}, {vT2}, 9, {vT}
    v_lshrrev_b32 {vT2}, 5, {vL}
    v_lshl_add_u32 {vT}, {vT2}, 8, {vT}
    s_lshl_b32 {sT}, {sCH}, 12
    s_add_u32 {sT}, {sT}, {AT}""")
    for Pi in range(4):
        d = tf[0][Pi]; a0, a1 = cacc[2*Pi], cacc[2*Pi+1]
        P(f"""v_cvt_pk_bf16_f32 {d[0]}, {a0[0]}, {a0[1]}
        v_cvt_pk_bf16_f32 {d[1]}, {a0[2]}, {a0[3]}
        v_cvt_pk_bf16_f32 {d[2]}, {a1[0]}, {a1[1]}
        v_cvt_pk_bf16_f32 {d[3]}, {a1[2]}, {a1[3]}
        v_permlane16_swap_b32 {d[0]}, {d[2]}
        v_permlane16_swap_b32 {d[1]}, {d[3]}
        buffer_store_dwordx4 {d}, {vT}, {srdWS}, {sT} offen offset:{1024*Pi} sc1""")
    vAT = [V(), V()]
    P(f"""v_mov_b32 {vT2}, 2
    @waitvm wol
    ds_write_b32 {vLF}, {vT2}
    s_lshl_b32 {sT}, {sCT}, 2
    s_add_u32 {sT}, {sT}, {sLW}
    s_lshl_b32 {sT2}, {sT}, 4
    v_and_b32 {vT}, 15, {vL}
    v_add_u32 {vT}, {sT2}, {vT}
    v_mul_u32_u24 {vT}, {FS}, {vT}
    v_add_u32 {vT}, {F3}, {vT}
    v_lshrrev_b32 {vT2}, 4, {vL}
    v_lshlrev_b32 {vAT[0]}, 12, {vT2}
    v_and_b32 {vAT[1]}, 7, {vL}
    v_xor_b32 {vT2}, {vT2}, {vAT[1]}
    v_lshl_add_u32 {vAT[0]}, {vT2}, 4, {vAT[0]}
    v_bfe_u32 {vT2}, {vL}, 3, 1
    v_lshl_add_u32 {vAT[0]}, {vT2}, 8, {vAT[0]}
    s_lshl_b32 {sT}, {sT}, 16
    s_lshr_b32 {sT2}, {sMT2}, 1
    s_lshl_b32 {sT2}, {sT2}, 9
    s_add_u32 {sT}, {sT}, {sT2}
    s_and_b32 {sT2}, {sMT2}, 1
    s_lshl_b32 {sT2}, {sT2}, 7
    s_add_u32 {sT}, {sT}, {sT2}
    v_add_u32 {vAT[0]}, {sT}, {vAT[0]}
    v_xor_b32 {vAT[1]}, 64, {vAT[0]}
    s_waitcnt vmcnt(0)
    s_mov_b64 exec, 1
    buffer_store_dword {vOne}, {vF3}, {srdWS}, 0 offen sc1
    s_mov_b64 exec, -1""")
    stamp(P, 5)
    poll_global(P, vT, vE, 1, srdWS)
    stamp(P, 6)
    P(f"s_add_u32 m0, {sUB}, 512")
    for i in range(4):
        P(f"s_mov_b32 {sBase}, {AT + 16384*i - 1024*i}")
        P(f"buffer_load_dwordx4 {vAT[i&1]}, {srdWS}, {sBase} offen offset:{1024*i} sc1 lds")
    P(f"""v_mov_b32 {vT2}, 3
    s_waitcnt vmcnt(0)
    ds_write_b32 {vLF}, {vT2}
    s_waitcnt lgkmcnt(0)""")
    stamp(P, 7)
    dump_stamps(P, vT, z4, 1)
    P("s_endpgm")
    loader, vhiL, shiL = P, V.hi, S.hi

    P = Prog()
    S.reset(smark); V = Alloc('v', 1, 256)
    srdOUT = S(4)
    sWM, sWN, sHD, sIt, sStage, sDelta, sXS, sXP, sBase = [S() for _ in range(9)]
    sPC = S(2)
    alloc_stamps(12)
    vT, vT2, vZero, vOne, vF1, vF2 = [V() for _ in range(6)]
    vRA = [V(), V()]; vRB = [V() for _ in range(4)]
    fa = [[V(4) for _ in range(4)] for _ in range(2)]
    fb = [[V(4) for _ in range(6)] for _ in range(2)]
    acc = [[V(4) for _ in range(6)] for _ in range(4)]
    P("L_compute:")
    gx = [fa[0][i] for i in range(4)]; gw = [fa[1][0], fa[1][1]]
    P(f"""s_lshr_b32 {sWM}, {sW}, 1
    s_and_b32 {sWN}, {sW}, 1
    s_lshl_b32 {sHD}, {sHP}, 1
    s_add_u32 {sHD}, {sHD}, {sWN}
    s_lshl_b32 {sT}, {sMT}, 1
    s_add_u32 {sT}, {sT}, {sWM}
    s_lshl_b32 {sT}, {sT}, 5
    s_add_u32 {sT3}, {sT}, {sHD}
    s_lshl_b32 {sT}, {sT3}, 12
    v_lshlrev_b32 {vT2}, 4, {vL}
    v_add_u32 {vT}, {sT}, {vT2}
    s_waitcnt lgkmcnt(0)
    global_load_dwordx4 {gx[0]}, {vT}, {pX}
    global_load_dwordx4 {gx[1]}, {vT}, {pX} offset:1024
    global_load_dwordx4 {gx[2]}, {vT}, {pX} offset:2048
    global_load_dwordx4 {gx[3]}, {vT}, {pX} offset:3072
    global_load_dwordx4 {gw[0]}, {vT2}, {pGW}
    global_load_dwordx4 {gw[1]}, {vT2}, {pGW} offset:1024""")
    if o['codepf']:
        P(f"""s_getpc_b64 {sPC}
        L_pcref:
        s_sub_u32 {sPC[0]}, {sPC[0]}, L_pcref-{KNAME}
        s_subb_u32 {sPC[1]}, {sPC[1]}, 0
        s_lshr_b32 {sT}, s2, 3
        s_lshl_b32 {sT}, {sT}, 2
        s_add_u32 {sT}, {sT}, {sW}
        s_lshl_b32 {sT}, {sT}, 8
        v_lshl_add_u32 {vT}, {vL}, 2, {sT}
        v_min_u32 {vT}, L_codeend-{KNAME}-4, {vT}
        global_load_dword {fb[0][0][0]}, {vT}, {sPC}""")
    srd(P, srdWS, pWS, 0x10000000); srd(P, srdOUT, pOUT, 4*MB)
    P(f"""s_mul_i32 {sT}, {sT3}, {FS}
    s_add_u32 {sT}, {sT}, {F2}
    v_mov_b32 {vF2}, {sT}
    s_lshl_b32 {sT}, {sHD}, 1
    s_add_u32 {sT}, {sT}, {sWM}
    s_lshl_b32 {sT}, {sT}, 4
    s_add_u32 {sT}, {sT}, {sMT}
    s_mul_i32 {sT}, {sT}, {FS}
    s_add_u32 {sT}, {sT}, {F1}
    v_mov_b32 {vF1}, {sT}
    v_mov_b32 {vZero}, 0
    v_mov_b32 {vOne}, 1
    s_mov_b64 exec, 1
    buffer_store_dword {vZero}, {vF1}, {srdWS}, 0 offen sc1
    buffer_store_dword {vZero}, {vF2}, {srdWS}, 0 offen sc1
    s_mov_b64 exec, -1""")
    P(f"""s_lshl_b32 {sT}, {sWM}, 13
    v_and_b32 {vT}, 15, {vL}
    v_lshl_add_u32 {vRA[0]}, {vT}, 7, {sT}
    v_bfe_u32 {vT}, {vL}, 1, 3
    v_lshrrev_b32 {vT2}, 4, {vL}
    v_xor_b32 {vT}, {vT}, {vT2}
    v_lshl_add_u32 {vRA[0]}, {vT}, 4, {vRA[0]}
    v_xor_b32 {vRA[1]}, 64, {vRA[0]}
    v_lshlrev_b32 {vRB[0]}, 10, {vT2}
    v_bfe_u32 {vT}, {vL}, 2, 2
    v_lshl_add_u32 {vRB[0]}, {vT}, 7, {vRB[0]}
    s_lshl_b32 {sT}, {sWN}, 1
    v_bfe_u32 {vT}, {vL}, 3, 2
    v_xor_b32 {vT}, {sT}, {vT}
    v_lshl_add_u32 {vRB[0]}, {vT}, 5, {vRB[0]}
    v_and_b32 {vT}, 3, {vL}
    v_lshl_add_u32 {vRB[0]}, {vT}, 3, {vRB[0]}
    v_add_u32 {vRB[0]}, {ASZ}, {vRB[0]}
    v_xor_b32 {vRB[1]}, 32, {vRB[0]}
    s_lshl_b32 {sT}, {sWM}, 5
    v_xor_b32 {vRB[2]}, {sT}, {vRB[0]}
    v_xor_b32 {vRB[3]}, 32, {vRB[2]}
    s_mov_b32 {sIt}, 0
    s_mov_b32 {sStage}, 0""")
    for row in acc:
        for t in row:
            for r in range(4): P(f"v_mov_b32 {t[r]}, 0")
    g2 = fb[1][0]
    P(f"v_mov_b32 {g2[0]}, 0\nv_mov_b32 {g2[1]}, 0")
    for r in range(2):
        for h in range(2):
            for d in range(4): P(f"v_dot2c_f32_bf16 {g2[r]}, {gx[2*r+h][d]}, {gw[h][d]}")
    for ctl in ("row_shr:1 row_mask:0xf", "row_shr:2 row_mask:0xf", "row_shr:4 row_mask:0xf", "row_shr:8 row_mask:0xf", "row_bcast:15 row_mask:0xa", "row_bcast:31 row_mask:0xc"):
        for r in range(2): P(f"v_add_f32_dpp {g2[r]}, {g2[r]}, {g2[r]} {ctl} bank_mask:0xf")
    for r in range(2): bf16r(P, g2[r], g2[r])
    for r in range(2): P(f"v_mul_f32 {g2[r]}, {LOG2E ^ 0x80000000}, {g2[r]}")
    for r in range(2): P(f"v_exp_f32 {g2[r]}, {g2[r]}")
    for r in range(2): P(f"v_add_f32 {g2[r]}, 1.0, {g2[r]}")
    for r in range(2): P(f"v_rcp_f32 {g2[r]}, {g2[r]}")
    for r in range(2): bf16r(P, g2[r], g2[r])
    P(f"""s_lshl_b32 {sT}, {sT3}, 3
    s_add_u32 {sT}, {sT}, {GG}
    v_mov_b32 {vT}, {sT}
    s_mov_b32 {sEx[0]}, 0
    s_mov_b32 {sEx[1]}, 0x80000000
    s_mov_b64 exec, {sEx}
    buffer_store_dwordx2 {g2.sub(0,2)}, {vT}, {srdWS}, 0 offen sc1
    s_mov_b64 exec, -1
    s_barrier""")
    def reads(ks, buf):
        ra = [L(f"ds_read_b128 {fa[buf][mi]}, {vRA[ks]} offset:{mi*2048}") for mi in range(4)]
        rb = []
        for ni in range(6):
            ad = vRB[(ni & 1) + (2 if ni >= 4 else 0)]
            for t in range(2):
                rb.append(L(f"ds_read_b64_tr_b16 {fb[buf][ni].sub(2*t,2)}, {ad} offset:{(ni>>1)*8192 + ks*4096 + t*512}"))
        return ra[:1] + rb + ra[1:]
    def mfmas(buf):
        out = []
        for mi in range(4):
            for n in range(6):
                ni = n if mi % 2 == 0 else 5 - n
                a_, b_ = (fb[buf][ni], fa[buf][mi]) if ni < 2 else (fa[buf][mi], fb[buf][ni])
                out.append(L(f"{MF} {acc[mi][ni]}, {a_}, {b_}, {acc[mi][ni]}"))
        return out
    for g in reads(0, 0): P.extend(g)
    stamp(P, 1)
    P("s_waitcnt lgkmcnt(0)")
    P.loop_begin("L_gemm")
    m0_, m1_ = mfmas(0), mfmas(1)
    adv = L(f"""s_add_u32 {sStage}, {sStage}, 1
    s_mov_b32 {sDelta}, {SSZ}
    s_cmp_eq_u32 {sStage}, 3
    s_cselect_b32 {sDelta}, {(-2*SSZ) & 0xffffffff}, {sDelta}
    s_cselect_b32 {sStage}, 0, {sStage}""")
    adv2 = [L(f"v_add_u32 {r}, {sDelta}, {r}") for r in vRA + vRB]
    P.extend(merge(m0_[:16], reads(1, 1)))
    P.extend(merge(m0_[16:18], [[x] for x in adv]))
    P.extend(merge(m0_[18:], adv2))
    P("s_waitcnt lgkmcnt(0)")
    P.extend(m1_[0] + m1_[1])
    P("s_waitcnt vmcnt(1)\ns_barrier")
    P.extend(merge(m1_[2:18], reads(0, 0)))
    P.extend(merge(m1_[18:], [L(f"s_add_u32 {sIt}, {sIt}, 1"), L(f"s_cmp_lt_u32 {sIt}, 16")]))
    P("s_waitcnt lgkmcnt(0)\ns_cbranch_scc1 L_gemm")
    P.loop_end()
    stamp(P, 2)
    if o['prio']: P(f"s_setprio {o['prio']}")
    V.reset(fa[0][0].idx)
    fr_end = acc[0][0].idx
    tmp = [V() for _ in range(8)]
    pkf = [[V(4), V(4)] for _ in range(2)]; vf = [[V(4), V(4)] for _ in range(2)]
    kvt = [[V(4), V(4)] for _ in range(2)]; zt = [V(4), V(4)]
    ones = V(4); sEps = S(); sL2E = S()
    assert V.next <= fr_end, V.next
    V.next = acc[3][5].idx + 4
    def phi(tile, dst2):
        t0 = tmp[0:4]; t1 = tmp[4:8]
        for j in range(4): P(f"v_mul_f32 {t0[j]}, {sL2E}, {tile[j]}")
        for j in range(4): P(f"v_exp_f32_e64 {t0[j]}, {t0[j]} clamp")
        for j in range(4): P(f"v_max_f32 {t1[j]}, {sEps}, {tile[j]}")
        for j in range(4): P(f"v_add_f32 {t0[j]}, {t0[j]}, {t1[j]}")
        P(f"v_cvt_pk_bf16_f32 {dst2[0]}, {t0[0]}, {t0[1]}\nv_cvt_pk_bf16_f32 {dst2[1]}, {t0[2]}, {t0[3]}")
    P(f"s_mov_b32 {sEps}, 0x358637bd\ns_mov_b32 {sL2E}, {LOG2E}")
    for r in range(4): P(f"v_mov_b32 {ones[r]}, 0x3f803f80")
    P(f"""s_lshl_b32 {sXS}, {sW}, 11
    s_add_u32 {sXS}, {sXS}, {XS012}
    s_cmp_eq_u32 {sW}, 3
    s_cselect_b32 {sXS}, {XS3}, {sXS}
    s_xor_b32 {sT}, {sW}, 2
    s_lshl_b32 {sXP}, {sT}, 11
    s_add_u32 {sXP}, {sXP}, {XS012}
    s_cmp_eq_u32 {sT}, 3
    s_cselect_b32 {sXP}, {XS3}, {sXP}""")
    for p in range(2):
        for e in range(2):
            for h in range(2):
                t = acc[2*p+h][4+e]
                P(f"v_cvt_pk_bf16_f32 {vf[p][e][2*h]}, {t[0]}, {t[1]}\nv_cvt_pk_bf16_f32 {vf[p][e][2*h+1]}, {t[2]}, {t[3]}")
        for d in range(2):
            for h in range(2): phi(acc[2*p+h][2+d], pkf[p][d].sub(2*h, 2))
            for e in (1, 0): P(f"{MF} {kvt[d][e]}, {pkf[p][d]}, {vf[p][e]}, {kvt[d][e] if p else 0}")
            P(f"{MF} {zt[d]}, {pkf[p][d]}, {ones}, {zt[d] if p else 0}")
    vXS, vXP, vPA, vZA = V(), V(), V(), V()
    P(f"""v_lshl_add_u32 {vXS}, {vL}, 4, {sXS}
    v_lshl_add_u32 {vXP}, {vL}, 4, {sXP}
    s_lshl_b32 {sT}, {sHD}, 1
    s_add_u32 {sT}, {sT}, {sWM}
    s_lshl_b32 {sT2}, {sT}, 14
    s_add_u32 {sT2}, {sT2}, {PART}
    v_lshl_add_u32 {vPA}, {vL}, 4, {sT2}
    s_lshl_b32 {sT}, {sT}, 4
    s_add_u32 {sT}, {sT}, {sMT}
    s_lshl_b32 {sT}, {sT}, 6
    s_add_u32 {sT}, {sT}, {ZP}
    v_add_u32 {vZA}, {sT}, {vL}
    s_lshl_b32 {sBase}, {sMT}, 10
    ds_write_b128 {vXS}, {kvt[0][1]}
    ds_write_b128 {vXS}, {kvt[1][1]} offset:1024""")
    zf = pkf[0][0]; pf = pkf[0][1]
    P(f"""v_cvt_pk_bf16_f32 {zf[0]}, {zt[0][0]}, {zt[0][1]}
    v_cvt_pk_bf16_f32 {zf[1]}, {zt[0][2]}, {zt[0][3]}
    v_cvt_pk_bf16_f32 {zf[2]}, {zt[1][0]}, {zt[1][1]}
    v_cvt_pk_bf16_f32 {zf[3]}, {zt[1][2]}, {zt[1][3]}
    s_mov_b32 {sEx[0]}, 0x00010001
    s_mov_b32 {sEx[1]}, 0x00010001
    s_waitcnt lgkmcnt(0)
    s_barrier
    ds_read_b128 {kvt[0][1]}, {vXP}
    ds_read_b128 {kvt[1][1]}, {vXP} offset:1024
    s_mov_b64 exec, {sEx}
    buffer_store_dwordx4 {zf}, {vZA}, {srdWS}, 0 offen sc1
    s_mov_b64 exec, -1""")
    for d in range(2):
        for j in range(4): P(f"v_add_f32 {kvt[d][0][j]}, {kvt[d][0][j]}, {kvt[d][1][j]}")
        P(f"v_cvt_pk_bf16_f32 {pf[2*d]}, {kvt[d][0][0]}, {kvt[d][0][1]}\nv_cvt_pk_bf16_f32 {pf[2*d+1]}, {kvt[d][0][2]}, {kvt[d][0][3]}")
    P(f"buffer_store_dwordx4 {pf}, {vPA}, {srdWS}, {sBase} offen sc1")
    stamp(P, 3)
    pq = [V(4) for _ in range(4)]
    for tt in range(2):
        for d in range(2): phi(acc[tt][d], pq[tt].sub(2*d, 2))
    P(f"""s_waitcnt vmcnt(0)
    s_mov_b64 exec, 1
    buffer_store_dword {vOne}, {vF1}, {srdWS}, 0 offen sc1
    s_mov_b64 exec, -1""")
    stamp(P, 4)
    for tt in range(2, 4):
        for d in range(2): phi(acc[tt][d], pq[tt].sub(2*d, 2))
    selr = V(6); vP1 = V()
    P(f"""v_and_b32 {vT}, 15, {vL}
    v_lshrrev_b32 {vT2}, 4, {vL}
    v_lshlrev_b32 {vT2}, 2, {vT2}
    v_sub_u32 {vT}, {vT}, {vT2}
    v_mov_b32 {selr[0]}, 0
    v_mov_b32 {selr[1]}, 0
    v_mov_b32 {selr[4]}, 0
    v_mov_b32 {selr[5]}, 0
    v_mov_b32 {tmp[0]}, 0x3f80
    v_mov_b32 {tmp[1]}, 0x3f800000
    v_cmp_eq_u32 vcc, 0, {vT}
    v_cndmask_b32 {selr[2]}, 0, {tmp[0]}, vcc
    v_cmp_eq_u32 vcc, 1, {vT}
    v_cndmask_b32 {selr[2]}, {selr[2]}, {tmp[1]}, vcc
    v_cmp_eq_u32 vcc, 2, {vT}
    v_cndmask_b32 {selr[3]}, 0, {tmp[0]}, vcc
    v_cmp_eq_u32 vcc, 3, {vT}
    v_cndmask_b32 {selr[3]}, {selr[3]}, {tmp[1]}, vcc
    s_lshl_b32 {sT}, {sHD}, 5
    v_and_b32 {vT}, 31, {vL}
    v_add_u32 {vT}, {sT}, {vT}
    v_mul_u32_u24 {vP1}, {FS}, {vT}
    v_add_u32 {vP1}, {F1}, {vP1}
    s_lshl_b32 {sT}, {sHD}, 11
    s_add_u32 {sT}, {sT}, {ZP}
    v_and_b32 {vT}, 15, {vL}
    v_lshl_add_u32 {vZA}, {vT}, 6, {sT}
    v_lshrrev_b32 {vT}, 4, {vL}
    v_lshl_add_u32 {vZA}, {vT}, 4, {vZA}""")
    poll_global(P, vP1, vT, 1, srdWS)
    stamp(P, 5)
    parts = [R('v', acc[0][0].idx + 4*i, 4) for i in range(16)]
    zl = [R('v', acc[0][0].idx + 64 + 4*i, 4) for i in range(2)]
    zs = R('v', acc[0][0].idx + 72, 8)
    for i in range(2): P(f"buffer_load_dwordx4 {zl[i]}, {vZA}, {srdWS}, 0 offen offset:{1024*i} sc1")
    for p in range(16):
        if p % 4 == 0: P(f"s_mov_b32 {sBase}, {p*1024}")
        P(f"buffer_load_dwordx4 {parts[p]}, {vPA}, {srdWS}, {sBase} offen offset:{(p%4)*1024} sc1")
    for d in range(4):
        P(f"""v_lshlrev_b32 {zs[2*d]}, 16, {zl[0][d]}
        v_and_b32 {zs[2*d+1]}, 0xffff0000, {zl[0][d]}
        v_lshlrev_b32 {tmp[0]}, 16, {zl[1][d]}
        v_and_b32 {tmp[1]}, 0xffff0000, {zl[1][d]}
        v_add_f32 {zs[2*d]}, {zs[2*d]}, {tmp[0]}
        v_add_f32 {zs[2*d+1]}, {zs[2*d+1]}, {tmp[1]}""")
    for sh in (8, 4, 2, 1):
        for j in range(8): P(f"v_add_f32_dpp {zs[j]}, {zs[j]}, {zs[j]} row_ror:{sh} row_mask:0xf bank_mask:0xf")
    zb = zt[0]
    for d in range(4): P(f"v_cvt_pk_bf16_f32 {zb[d]}, {zs[2*d]}, {zs[2*d+1]}")
    sm = [kvt[0][0], kvt[1][0]]
    for p in range(16):
        P(f"{MF} {sm[0]}, {selr.sub(2,4)}, {parts[p]}, {sm[0] if p else 0}")
        P(f"{MF} {sm[1]}, {selr.sub(0,4)}, {parts[p]}, {sm[1] if p else 0}")
    vS3, vS3F, vOA = V(), V(), V()
    P(f"""s_lshl_b32 {sT}, {sW}, 10
    s_add_u32 {sT}, {sT}, {S3B}
    v_lshl_add_u32 {vS3}, {vL}, 4, {sT}
    s_lshl_b32 {sT}, {sW}, 2
    s_add_u32 {sT}, {sT}, {S3F}
    v_mov_b32 {vS3F}, {sT}
    v_cvt_pk_bf16_f32 {pf[0]}, {sm[0][0]}, {sm[0][1]}
    v_cvt_pk_bf16_f32 {pf[1]}, {sm[0][2]}, {sm[0][3]}
    v_cvt_pk_bf16_f32 {pf[2]}, {sm[1][0]}, {sm[1][1]}
    v_cvt_pk_bf16_f32 {pf[3]}, {sm[1][2]}, {sm[1][3]}
    ds_write_b128 {vS3}, {pf}
    ds_write_b32 {vS3F}, {vOne}
    v_xor_b32 {vS3F}, 8, {vS3F}
    s_lshl_b32 {sT}, {sWN}, 10
    s_add_u32 {sT}, {sT}, {S3B}
    v_lshl_add_u32 {vS3}, {vL}, 4, {sT}
    s_lshl_b32 {sT}, {sMT}, 1
    s_add_u32 {sT}, {sT}, {sWM}
    s_lshl_b32 {sT}, {sT}, 7
    s_add_u32 {sT}, {sT}, {sHD}
    s_lshl_b32 {sT}, {sT}, 10
    s_add_u32 {sT}, {sT}, {OF}
    v_lshl_add_u32 {vOA}, {vL}, 4, {sT}""")
    den = [R('v', acc[0][0].idx + 4*i, 4) for i in range(4)]
    for tt in range(4): P(f"{MF} {den[tt]}, {zb}, {pq[tt]}, 0")
    kf = [vf[0][0], vf[0][1]]
    l0, l1 = lab("s3"), lab("s3d")
    P(f"s_mov_b32 {sCnt}, 0")
    P.loop_begin(l0)
    P(f"""ds_read_b32 {vT}, {vS3F}
    ds_read_b128 {kf[0]}, {vS3}
    ds_read_b128 {kf[1]}, {vS3} offset:2048
    s_add_u32 {sCnt}, {sCnt}, 1
    s_cmp_gt_u32 {sCnt}, {SPIN_L}
    s_waitcnt lgkmcnt(0)
    s_cbranch_scc1 {l1}
    v_cmp_ne_u32 vcc, 1, {vT}
    s_cbranch_vccnz {l0}""")
    P.loop_end()
    P(f"{l1}:")
    num = [[R('v', acc[0][0].idx + 16 + 8*tt + 4*e, 4) for e in range(2)] for tt in range(4)]
    for tt in range(4):
        for e in range(2): P(f"{MF} {num[tt][e]}, {kf[e]}, {pq[tt]}, 0")
    for tt in range(4): P(f"v_add_f32 {den[tt][0]}, {sEps}, {den[tt][0]}")
    for tt in range(4): P(f"v_rcp_f32 {den[tt][0]}, {den[tt][0]}")
    for tt in range(4):
        for e in range(2):
            for j in range(4): P(f"v_mul_f32 {num[tt][e][j]}, {num[tt][e][j]}, {den[tt][0]}")
        of = pq[tt]
        for e in range(2):
            P(f"v_cvt_pk_bf16_f32 {of[2*e]}, {num[tt][e][0]}, {num[tt][e][1]}\nv_cvt_pk_bf16_f32 {of[2*e+1]}, {num[tt][e][2]}, {num[tt][e][3]}")
        P(f"s_mov_b32 {sBase}, {tt*32768}\nbuffer_store_dwordx4 {of}, {vOA}, {srdWS}, {sBase} offen sc1")
    stamp(P, 6)
    V.reset(vRA[0].idx)
    vWB = [V() for _ in range(4)]; vOL, vP2, vGA, vLFa = V(), V(), V(), V()
    vAR = [V(), V()]; gv = V(2); om = V(2); lf = V(4)
    wf = [[V(4) for _ in range(4)] for _ in range(2)]
    cc = [[V(4) for _ in range(4)] for _ in range(2)]
    RING = o['ring']
    keep_lo = pq[0].idx
    ring = [V(4) for _ in range(RING)]
    assert V.next <= keep_lo, (V.next, keep_lo)
    P(f"""v_lshrrev_b32 {vT}, 2, {vL}
    v_lshlrev_b32 {vWB[0]}, 7, {vT}
    v_bfe_u32 {vT}, {vL}, 3, 2
    v_lshl_add_u32 {vWB[0]}, {vT}, 5, {vWB[0]}
    v_and_b32 {vT}, 3, {vL}
    v_lshl_add_u32 {vWB[0]}, {vT}, 3, {vWB[0]}
    v_add_u32 {vWB[0]}, {wo_addr(0)}, {vWB[0]}
    v_xor_b32 {vWB[1]}, 32, {vWB[0]}
    v_xor_b32 {vWB[2]}, 64, {vWB[0]}
    v_xor_b32 {vWB[3]}, 96, {vWB[0]}
    s_lshl_b32 {sT}, {sMT2}, 2
    s_add_u32 {sT}, {sT}, {sW}
    s_lshl_b32 {sT2}, {sT}, 16
    s_add_u32 {sT2}, {sT2}, {OF}
    v_lshl_add_u32 {vOL}, {vL}, 4, {sT2}
    s_lshl_b32 {sT2}, {sT}, 7
    s_add_u32 {sT2}, {sT2}, {GG}
    v_and_b32 {vT}, 15, {vL}
    v_lshl_add_u32 {vGA}, {vT}, 2, {sT2}
    s_lshr_b32 {sT}, {sT}, 1
    s_lshl_b32 {sT}, {sT}, 5
    v_and_b32 {vT}, 31, {vL}
    v_add_u32 {vT}, {sT}, {vT}
    v_mul_u32_u24 {vP2}, {FS}, {vT}
    v_add_u32 {vP2}, {F2}, {vP2}
    v_mov_b32 {vLFa}, {LF}
    v_lshrrev_b32 {vT}, 2, {vL}
    v_lshlrev_b32 {vAR[0]}, 8, {vT}
    v_and_b32 {vT}, 7, {vT}
    s_lshl_b32 {sT}, {sW}, 1
    v_xor_b32 {vT}, {sT}, {vT}
    v_lshl_add_u32 {vAR[0]}, {vT}, 4, {vAR[0]}
    v_bfe_u32 {vT}, {vL}, 1, 1
    v_lshl_add_u32 {vAR[0]}, {vT}, 7, {vAR[0]}
    v_and_b32 {vT}, 1, {vL}
    v_lshl_add_u32 {vAR[0]}, {vT}, 3, {vAR[0]}
    v_add_u32 {vAR[0]}, {U0 + 512}, {vAR[0]}
    v_xor_b32 {vAR[1]}, 16, {vAR[0]}""")
    def wait_lf(level):
        l0, l1 = lab("lf"), lab("lfd")
        P(f"s_mov_b32 {sCnt}, 0")
        P.loop_begin(l0)
        P(f"""ds_read_b128 {lf}, {vLFa}
        s_add_u32 {sCnt}, {sCnt}, 1
        s_cmp_gt_u32 {sCnt}, {SPIN_L}
        s_waitcnt lgkmcnt(0)
        s_cbranch_scc1 {l1}
        v_min_u32 {lf[0]}, {lf[0]}, {lf[1]}
        v_min3_u32 {lf[0]}, {lf[0]}, {lf[2]}, {lf[3]}
        v_cmp_gt_u32 vcc, {level}, {lf[0]}
        s_cbranch_vccnz {l0}""")
        P.loop_end()
        P(f"{l1}:")
    P(f"""s_waitcnt vmcnt(0)
    s_mov_b64 exec, 1
    buffer_store_dword {vOne}, {vF2}, {srdWS}, 0 offen sc1
    s_mov_b64 exec, -1""")
    stamp(P, 7)
    wait_lf(1)
    def wreads(ks):
        kt, hh = ks >> 1, ks & 1
        base = wo_addr(0) if kt < 7 else (wo_addr(7) if kt < 12 else wo_addr(12))
        out = []
        for c in range(4):
            for t in range(2):
                out.append(L(f"ds_read_b64_tr_b16 {wf[ks&1][c].sub(2*t,2)}, {vWB[c]} offset:{wo_addr(kt) - base + hh*4096 + t*2048}"))
        return out
    for g in wreads(0): P.extend(g)
    poll_global(P, vP2, vT, 1, srdWS)
    stamp(P, 8)
    sO = [S(), S()]
    def oload(j):
        ks, tt = j >> 1, j & 1
        pre = f"s_mov_b32 {sO[tt]}, {tt*32768 + (ks & ~3)*1024}\n" if ks % 4 == 0 else ""
        return L(pre + f"buffer_load_dwordx4 {ring[j % RING]}, {vOL}, {srdWS}, {sO[tt]} offen offset:{(ks&3)*1024} sc1")
    for j in range(RING): P.extend(oload(j))
    for ks in range(32):
        m = [L(f"{MF} {cc[tt][c]}, {wf[ks&1][c]}, {ring[(2*ks+tt) % RING]}, {cc[tt][c] if ks else 0}") for tt in range(2) for c in range(4)]
        if ks + 1 in (14, 24):
            delta = wo_addr(7) - wo_addr(0) if ks + 1 == 14 else wo_addr(12) - wo_addr(7)
            for r in vWB: P(f"v_add_u32 {r}, {delta & 0xffffffff}, {r}")
        if ks + 1 == 24: wait_lf(2)
        if ks == 24: P(f"buffer_load_dword {gv[0]}, {vGA}, {srdWS}, 0 offen sc1\nbuffer_load_dword {gv[1]}, {vGA}, {srdWS}, 0 offen offset:64 sc1")
        rd = wreads(ks + 1) if ks < 31 else []
        for half in range(2):
            P.extend(merge(m[4*half:4*half+4], rd[4*half:4*half+4]))
            if 2*ks + half + RING < 64: P.extend(oload(2*ks + half + RING))
    stamp(P, 9)
    wait_lf(3)
    af = [[ring[2*tt + (c >> 1)].sub(2*(c & 1), 2) for c in range(4)] for tt in range(2)]
    for tt in range(2):
        for c in range(4): P(f"ds_read_b64_tr_b16 {af[tt][c]}, {vAR[tt]} offset:{c*USZ}")
    for tt in range(2):
        P(f"v_sub_f32 {om[tt]}, 1.0, {gv[tt]}"); bf16r(P, om[tt], om[tt])
    vOut = vOL
    P(f"""s_lshl_b32 {sT}, {sMT2}, 2
    s_add_u32 {sT}, {sT}, {sW}
    s_lshl_b32 {sT}, {sT}, 16
    s_lshl_b32 {sT2}, {sCT}, 7
    s_add_u32 {sT}, {sT}, {sT2}
    v_and_b32 {vT}, 15, {vL}
    v_lshl_add_u32 {vOut}, {vT}, 11, {sT}
    v_bfe_u32 {vT}, {vL}, 4, 1
    v_lshl_add_u32 {vOut}, {vT}, 5, {vOut}
    v_lshrrev_b32 {vT}, 5, {vL}
    v_lshl_add_u32 {vOut}, {vT}, 4, {vOut}""")
    tq = ring[4]
    for tt in range(2):
        for cp in range(2):
            d = ring[6 + 2*tt + cp]
            for q in range(2):
                c = 2*cp + q; t = cc[tt][c]; a2 = af[tt][c]
                P(f"""v_lshlrev_b32 {tq[0]}, 16, {a2[0]}
                v_and_b32 {tq[1]}, 0xffff0000, {a2[0]}
                v_lshlrev_b32 {tq[2]}, 16, {a2[1]}
                v_and_b32 {tq[3]}, 0xffff0000, {a2[1]}""")
                for j in range(4): P(f"v_mul_f32 {t[j]}, {om[tt]}, {t[j]}")
                for j in range(4): P(f"v_fmac_f32 {t[j]}, {gv[tt]}, {tq[j]}")
                P(f"v_cvt_pk_bf16_f32 {d[2*q]}, {t[0]}, {t[1]}\nv_cvt_pk_bf16_f32 {d[2*q+1]}, {t[2]}, {t[3]}")
            P(f"""v_permlane16_swap_b32 {d[0]}, {d[2]}
            v_permlane16_swap_b32 {d[1]}, {d[3]}
            s_mov_b32 {sBase}, {tt*32768}
            buffer_store_dwordx4 {d}, {vOut}, {srdOUT}, {sBase} offen offset:{64*cp}""")
    stamp(P, 10)
    if stamps:
        P("s_waitcnt vmcnt(0)"); stamp(P, 11)
    dump_stamps(P, vT, lf, 0)
    P("L_end:\ns_endpgm\nL_codeend:")
    compute, vhiC, shiC = P, V.hi, S.hi

    hdr = open("gated_mix__ssm_conv_s4d__linear_attn_block__prompt.s.ref").read().split("; Override")[0] if o.get('hdr') else ""
    out = [hdr + "; @launch grid=(256,1,1) block=(512,1,1) lds=163840",
           '.amdgcn_target "amdgcn-amd-amdhsa--gfx950"', ".text", f".globl {KNAME}", ".p2align 8", f".type {KNAME},@function", f"{KNAME}:"]
    out += E.finalize() + loader.finalize() + OOL.finalize() + compute.finalize()
    out += ['.section .rodata,"a"', kernel_desc(KNAME, 256, 0, 102)]
    info = dict(vL=vhiL, vC=vhiC, sL=shiL, sC=shiC, nside=len(side))
    return "\n".join(out), info

if __name__ == "__main__":
    opts = dict(hdr=True); opts.update(eval(sys.argv[2]) if len(sys.argv) > 2 else {})
    txt, info = gen(stamps=opts.get('stamps', False), opts=opts)
    open(sys.argv[1], "w").write(txt)
    print(info)
```

```python
import sys, math
from asm import R, v, s, Alloc, kernel_desc
from prog import Prog, I, L, merge

KNAME = "gated_mix__ssm_conv_s4d__linear_attn_block__prompt_kernel"
MB = 1 << 20
UT, AT, OF, PART, ZP, GG = 0, 4*MB, 8*MB, 12*MB, 13*MB, 13*MB + 512*1024
F1, F2, F3 = 14*MB, 14*MB + 256*1024, 14*MB + 512*1024
FS = 64
STAMP_OFF = 200 << 20
ASZ, BSZ = 16384, 24576
SSZ = ASZ + BSZ
U0, USZ = 40960, 4608
KB0, KSZ = 122880, 8704
XS012, XS3, S3B = 75776, 157696, 159744
LF, S3F = U0, U0 + 16
def wo_addr(kt):
    if kt < 2: return 59392 + 8192*kt
    if kt < 7: return 81920 + 8192*(kt-2)
    if kt < 12: return 8192*(kt-7)
    return KB0 + KSZ*(kt-12)
LOG2E = 0x3fb8aa3b
INV2PI = 0x3e22f983
SPIN_G, SPIN_L = 40000, 400000
MF = "v_mfma_f32_16x16x32_bf16"

def gen(stamps=False, opts=None):
    o = dict(ring=16, prio=1, codepf=True)
    o.update(opts or {})
    S = Alloc('s', 3, 102)
    sW = S()
    kp = R('s', 4, 16); kq = R('s', 20, 8); kr = R('s', 28, 4); S.next = 32
    pX, pLA, pAI, pCR, pCI, pLDT, pDS = [kp.sub(2*i, 2) for i in range(7)]
    pWQ, pWO, pGW, pOUT = [kq.sub(2*i, 2) for i in range(4)]
    pDBG, pWS = kr.sub(0, 2), kr.sub(2, 2)
    srdWS = S(4)
    sMT, sHP, sMT2, sCT, sT, sT2, sT3, sCnt = [S() for _ in range(8)]
    sEx = S(2)
    st = [S(2)] if stamps else None
    smark = S.mark()
    def alloc_stamps(n):
        if stamps:
            del st[1:]
            st.extend(S(2) for _ in range(n - 1))
    role_now = [None]
    def stamp(P, i):
        if o.get('pad'):
            if i == 0: P(f"s_memrealtime {st[0]}")
            elif role_now[0] == 'c' and i == o['pad'][0]:
                l0 = f"L_pad_{i}"
                P.loop_begin(l0)
                P(f"""s_memrealtime {st[1]}
                s_waitcnt lgkmcnt(0)
                s_sub_u32 {st[1][0]}, {st[1][0]}, {st[0][0]}
                s_cmp_lt_u32 {st[1][0]}, {o['pad'][1]*100}
                s_cbranch_scc1 {l0}""")
                P.loop_end()
            return
        if stamps: P(f"s_memrealtime {st[i]}")
    def dump_stamps(P, vT, d, role):
        if not stamps or o.get('pad'): return
        if o.get('dbgst'):
            if role == 1: return
            P(f"s_waitcnt vmcnt(0) lgkmcnt(0)\ns_mov_b64 exec, 1\nv_mov_b32 {vT}, 0\ns_not_b32 {st[0][1]}, {st[0][0]}")
            P(f"v_mov_b32 {d[0]}, {st[0][1]}\nglobal_atomic_umax {vT}, {d[0]}, {pDBG} offset:4 sc1\ns_nop 1")
            for i in range(len(st)):
                P(f"v_mov_b32 {d[0]}, {st[i][0]}\nglobal_atomic_umax {vT}, {d[0]}, {pDBG} offset:{8+4*i} sc1\ns_nop 1")
            return
        P(f"""s_waitcnt vmcnt(0) lgkmcnt(0)
        s_lshl_b32 {sT}, s2, 3
        s_add_u32 {sT}, {sT}, {sW}
        s_lshl_b32 {sT}, {sT}, 7
        s_add_u32 {sT}, {sT}, {STAMP_OFF}
        v_mov_b32 {vT}, {sT}
        s_mov_b64 exec, 1""")
        for i in range(len(st)):
            P(f"""v_mov_b32 {d[0]}, {st[i][0]}
            v_mov_b32 {d[1]}, {st[i][1]}
            buffer_store_dwordx2 {d.sub(0,2)}, {vT}, {srdWS}, 0 offen offset:{8*i}
            s_nop 1""")
    def srd(P, r, p, size):
        P(f"s_mov_b32 {r[0]}, {p[0]}\ns_mov_b32 {r[1]}, {p[1]}\ns_mov_b32 {r[2]}, {size}\ns_mov_b32 {r[3]}, 0x20000")
    uid = [0]
    def lab(n): uid[0] += 1; return f"L_{n}_{uid[0]}"
    def poll_global(P, vaddr, vtmp, want, srdr, cmp='ne'):
        l0, l1 = lab("poll"), lab("polld")
        P(f"s_mov_b32 {sCnt}, 0")
        P.loop_begin(l0)
        P(f"""buffer_load_dword {vtmp}, {vaddr}, {srdr}, 0 offen sc1
        s_add_u32 {sCnt}, {sCnt}, 1
        s_cmp_gt_u32 {sCnt}, {SPIN_G}
        s_waitcnt vmcnt(0)
        s_cbranch_scc1 {l1}
        v_cmp_{cmp}_u32 vcc, {want}, {vtmp}
        s_cbranch_vccnz {l0}""")
        P.loop_end()
        P(f"{l1}:")
    def bf16r(P, dst, src):
        P(f"v_cvt_pk_bf16_f32 {dst}, {src}, {src}\nv_lshlrev_b32 {dst}, 16, {dst}")

    E = Prog()
    E(f"""s_cmp_ge_u32 s2, 256
    s_cbranch_scc1 L_end
    s_load_dwordx16 {kp}, s[0:1], 0
    s_load_dwordx8 {kq}, s[0:1], 64
    s_load_dwordx4 {kr}, s[0:1], 96""")
    stamp(E, 0)
    E(f"""v_lshrrev_b32 v1, 6, v0
    v_and_b32 v0, 63, v0
    s_and_b32 {sT}, s2, 7
    v_readfirstlane_b32 {sW}, v1
    s_lshr_b32 {sT2}, s2, 3
    s_and_b32 {sMT}, {sT}, 1
    s_lshl_b32 {sMT}, {sMT}, 3
    s_and_b32 {sT3}, {sT2}, 7
    s_add_u32 {sMT}, {sMT}, {sT3}
    s_lshr_b32 {sHP}, {sT}, 1
    s_lshl_b32 {sHP}, {sHP}, 2
    s_lshr_b32 {sT3}, {sT2}, 3
    s_add_u32 {sHP}, {sHP}, {sT3}
    s_and_b32 {sMT2}, {sT}, 3
    s_lshl_b32 {sMT2}, {sMT2}, 2
    s_and_b32 {sT3}, {sT2}, 3
    s_add_u32 {sMT2}, {sMT2}, {sT3}
    s_lshr_b32 {sCT}, {sT}, 2
    s_lshl_b32 {sCT}, {sCT}, 3
    s_lshr_b32 {sT3}, {sT2}, 2
    s_add_u32 {sCT}, {sCT}, {sT3}
    s_cmp_lt_u32 {sW}, 4
    s_cbranch_scc1 L_compute""")
    vL = v(0)

    P = Prog()
    S.reset(smark); V = Alloc('v', 1, 256)
    srdX, srdW, srdWO, srdXT, srdUT = S(4), S(4), S(4), S(4), S(4)
    sLW, sM0A, sM0B, sCH, sKB, sUB, sBase = [S() for _ in range(7)]
    soA = [S() for _ in range(4)]; soB = [S() for _ in range(6)]
    sPlo = S()
    alloc_stamps(8)
    vT, vT2 = V(), V()
    vAo = [V(), V()]; vBo = [V(), V()]
    P(f"""s_sub_u32 {sLW}, {sW}, 4
    v_lshrrev_b32 {vT}, 3, {vL}
    v_lshlrev_b32 {vAo[0]}, 11, {vT}
    v_mul_u32_u24 {vBo[0]}, 6144, {vT}
    v_lshrrev_b32 {vT}, 4, {vL}
    v_and_b32 {vT2}, 7, {vL}
    v_xor_b32 {vT2}, {vT2}, {vT}
    v_lshl_add_u32 {vAo[0]}, {vT2}, 4, {vAo[0]}
    v_and_b32 {vT}, 1, {vT}
    v_lshlrev_b32 {vT}, 1, {vT}
    v_and_b32 {vT2}, 7, {vL}
    v_xor_b32 {vT2}, {vT2}, {vT}
    v_lshl_add_u32 {vBo[0]}, {vT2}, 4, {vBo[0]}
    s_lshl_b32 {sT}, {sMT}, 18
    s_lshl_b32 {sT2}, {sLW}, 16
    s_add_u32 {sT}, {sT}, {sT2}
    v_add_u32 {vAo[0]}, {sT}, {vAo[0]}
    v_xor_b32 {vAo[1]}, 64, {vAo[0]}
    s_lshl_b32 {sT}, {sHP}, 7
    s_mul_i32 {sT2}, {sLW}, {2*8*6144}
    s_add_u32 {sT}, {sT}, {sT2}
    v_add_u32 {vBo[0]}, {sT}, {vBo[0]}
    v_xor_b32 {vBo[1]}, 64, {vBo[0]}
    s_lshl_b32 {sM0A}, {sLW}, 12
    s_lshl_b32 {sM0B}, {sLW}, 11
    s_add_u32 {sM0B}, {sM0B}, {ASZ}""")
    for i in range(4): P(f"s_mov_b32 {soA[i]}, {16384*i - 1024*i}")
    for i in range(6): P(f"s_mov_b32 {soB[i]}, {(i>>1)*2048 + (i&1)*(8*6144 - 1024)}")
    P("s_waitcnt lgkmcnt(0)")
    srd(P, srdX, pX, 4*MB); srd(P, srdW, pWQ, 6*MB)
    def dma_tile(t):
        base = (t % 3) * SSZ; tag = f"t{t}"
        g = []
        for i in range(4):
            pre = L(f"s_add_u32 m0, {sM0A}, {base}") if i == 0 else []
            g.append(pre + L(f"buffer_load_dwordx4 {vAo[i&1]}, {srdX}, {soA[i]} offen offset:{1024*i} lds", tag))
        for i in range(6):
            pre = L(f"s_add_u32 m0, {sM0B}, {base + (i>>1)*8192}") if (i & 1) == 0 else []
            g.append(pre + L(f"buffer_load_dwordx4 {vBo[i&1]}, {srdW}, {soB[i]} offen offset:{1024*(i&1)} lds", tag))
        g[-1] = g[-1] + L(f"""s_add_u32 {srdX[0]}, {srdX[0]}, 128
        s_addc_u32 {srdX[1]}, {srdX[1]}, 0
        s_add_u32 {srdW[0]}, {srdW[0]}, {64*6144}
        s_addc_u32 {srdW[1]}, {srdW[1]}, 0""")
        return g
    for t in range(2):
        for g in dma_tile(t): P.extend(g)
    srd(P, srdWS, pWS, 0x10000000); srd(P, srdWO, pWO, 2*MB)
    srd(P, srdXT, pX, 4*MB); srd(P, srdUT, pWS, 4*MB)
    vPar = V(4); vLdt, vDsk = V(), V()
    xr = V(32); xo = V(32)
    vUA = V()
    P(f"""s_cmp_lt_u32 {sLW}, 2
    s_cselect_b32 {srdXT[2]}, {srdXT[2]}, 0
    s_cselect_b32 {srdUT[2]}, {srdUT[2]}, 0
    s_lshr_b32 {sT}, s2, 3
    s_lshl_b32 {sT}, {sT}, 5
    s_lshl_b32 {sT2}, {sLW}, 3
    s_add_u32 {sT}, {sT}, {sT2}
    s_and_b32 {sT2}, s2, 7
    s_add_u32 {sCH}, {sT}, {sT2}
    s_mul_i32 {sKB}, {sLW}, {KSZ}
    s_add_u32 {sKB}, {sKB}, {KB0}
    s_mul_i32 {sUB}, {sLW}, {USZ}
    s_add_u32 {sUB}, {sUB}, {U0}
    s_lshl_b32 {sT}, {sCH}, 8
    v_lshl_add_u32 {vT}, {vL}, 2, {sT}
    global_load_dword {vPar[0]}, {vT}, {pLA}
    global_load_dword {vPar[1]}, {vT}, {pAI}
    global_load_dword {vPar[2]}, {vT}, {pCR}
    global_load_dword {vPar[3]}, {vT}, {pCI}
    s_lshl_b32 {sT}, {sCH}, 1
    v_mov_b32 {vT}, {sT}
    global_load_ushort {vLdt}, {vT}, {pLDT}
    global_load_ushort {vDsk}, {vT}, {pDS}""")
    P(f"""s_and_b32 {sT}, {sLW}, 1
    s_lshl_b32 {sT}, {sT}, 17
    s_lshl_b32 {sT2}, {sMT}, 18
    s_add_u32 {sT}, {sT}, {sT2}
    s_lshl_b32 {sT2}, {sHP}, 7
    s_add_u32 {sT}, {sT}, {sT2}
    v_lshrrev_b32 {vT}, 3, {vL}
    v_lshlrev_b32 {vT}, 14, {vT}
    v_and_b32 {vT2}, 7, {vL}
    v_lshl_add_u32 {vT}, {vT2}, 4, {vT}
    v_add_u32 {vT}, {sT}, {vT}""")
    for i in range(8):
        if i % 2 == 0: P(f"s_mov_b32 {sT}, {i*2048}")
        P(f"buffer_load_dwordx4 {xr.sub(4*i,4)}, {vT}, {srdXT}, {sT} offen offset:{(i&1)*2048}")
    vF3, vZero = V(), V()
    P(f"""s_mul_i32 {sT}, {sCH}, {FS}
    s_add_u32 {sT}, {sT}, {F3}
    v_mov_b32 {vF3}, {sT}
    v_mov_b32 {vZero}, 0
    s_mov_b64 exec, 1
    buffer_store_dword {vZero}, {vF3}, {srdWS}, 0 offen sc1
    s_mov_b64 exec, -1""", "early")
    P(f"""s_lshl_b32 {sT}, {sHP}, 18
    s_lshl_b32 {sT2}, {sMT}, 10
    s_add_u32 {sT}, {sT}, {sT2}
    s_and_b32 {sT2}, {sLW}, 1
    s_lshl_b32 {sT2}, {sT2}, 9
    s_add_u32 {sT}, {sT}, {sT2}
    v_bfe_u32 {vT}, {vL}, 2, 1
    v_lshlrev_b32 {vUA}, 17, {vT}
    v_lshrrev_b32 {vT}, 3, {vL}
    v_lshl_add_u32 {vUA}, {vT}, 6, {vUA}
    v_and_b32 {vT}, 3, {vL}
    v_lshl_add_u32 {vUA}, {vT}, 4, {vUA}
    v_add_u32 {vUA}, {sT}, {vUA}""")
    P("@waitvm t0\ns_barrier")
    stamp(P, 1)

    side = []
    def G(txt, tag=None): side.extend([[x] for x in L(txt, tag)])
    def GA(txt, tag=None): side.append(L(txt, tag))
    sPhi = S()
    G(f"s_mov_b32 {sPlo}, 0x05040100\ns_mov_b32 {sPhi}, 0x07060302")
    for jj in range(8):
        for q in range(4):
            G(f"v_perm_b32 {xo[4*jj+q]}, {xr[4*(2*q+1) + (jj>>1)]}, {xr[4*(2*q) + (jj>>1)]}, {sPhi if jj & 1 else sPlo}")
        GA(f"s_mov_b32 {sBase}, {jj*16384}\nbuffer_store_dwordx4 {xo.sub(4*jj,4)}, {vUA}, {srdUT}, {sBase} offen sc1", "early")
    n_early = len(side)
    vE = V()
    kmark = V.mark()
    vKW, vKR, vDt = V(), V(), V()
    al, be, cr, ci, ta, tb_ = [V() for _ in range(6)]
    W = {p: (V(), V(), V()) for p in (1, 2, 4, 8, 256)}
    xa, xb, xc, xd = (V(), V()), (V(), V()), (V(), V()), (V(), V())
    pk = [V() for _ in range(4)]
    ff = xr; fe = xo
    kacc = V(16)
    G(f"""v_lshl_add_u32 {vKW}, {vL}, 2, {sKB}
    v_and_b32 {ta}, 31, {vL}
    v_mul_u32_u24 {vKR}, 272, {ta}
    v_lshrrev_b32 {ta}, 5, {vL}
    v_lshl_add_u32 {vKR}, {ta}, 4, {vKR}
    v_add_u32 {vKR}, {sKB}, {vKR}
    v_lshlrev_b32 {vDt}, 16, {vLdt}
    v_mul_f32 {vDt}, {LOG2E}, {vDt}
    v_exp_f32 {vDt}, {vDt}
    v_lshlrev_b32 {vDsk}, 16, {vDsk}
    v_cvt_pk_bf16_f32 {vDt}, {vDt}, {vDt}
    v_lshlrev_b32 {vDt}, 16, {vDt}""")
    pki = [0]
    def put(row_list, x, neg):
        r = pk[pki[0] % 4]; pki[0] += 1
        G(f"v_cvt_pk_bf16_f32 {r}, {x[0]}, {'-' if neg else ''}{x[1]}")
        for row in row_list: G(f"ds_write_b32 {vKW}, {r} offset:{row*272}")
    def cmul(y, x, w):
        G(f"""v_mul_f32 {y[0]}, {x[1]}, {w[2]}
        v_mul_f32 {y[1]}, {x[1]}, {w[0]}
        v_fmac_f32 {y[0]}, {x[0]}, {w[0]}
        v_fmac_f32 {y[1]}, {x[0]}, {w[1]}""")
    rho = lambda r, h: 8*(r >> 2) + 4*h + (r & 3)
    rows = {}
    def addrow(hi, r, h): rows.setdefault(hi, []).append(rho(r, h))
    for r in range(9): addrow(r, r, 0)
    for r, off in enumerate([0, 0, 2, 4, 4, 4, 6, 8, 8]): addrow(256 + off, r, 1)
    for h in range(2):
        for k in range(3): addrow(512 + 256*h + 4*k, 9 + k, h)
        for k in range(2): addrow(1024 + 256*h + 8*k, 12 + k, h); addrow(1536 + 256*h + 8*k, 14 + k, h)
    assert sorted(x for l in rows.values() for x in l) == list(range(32))
    for st_ in range(2):
        unp = (lambda d, x: f"v_lshlrev_b32 {d}, 16, {x}") if st_ == 0 else (lambda d, x: f"v_and_b32 {d}, 0xffff0000, {x}")
        G(f"""{unp(al, vPar[0])}
        v_mul_f32 {al}, {LOG2E}, {al}
        v_exp_f32 {al}, {al}
        {unp(be, vPar[1])}
        {unp(cr, vPar[2])}
        v_cvt_pk_bf16_f32 {al}, {al}, {al}
        {unp(ci, vPar[3])}
        v_lshlrev_b32 {al}, 16, {al}
        v_mul_f32 {al}, {al}, {vDt}
        v_mul_f32 {be}, {be}, {vDt}
        v_mul_f32 {cr}, {cr}, {vDt}
        v_mul_f32 {ci}, {ci}, {vDt}
        v_mul_f32 {al}, {LOG2E ^ 0x80000000}, {al}
        v_mul_f32 {be}, {INV2PI}, {be}
        v_add_f32 {cr}, {cr}, {cr}
        v_add_f32 {ci}, {ci}, {ci}""")
        import struct
        f2u = lambda x: struct.unpack('<I', struct.pack('<f', x))[0]
        for p in (8, 1, 256):
            w = W[p]
            G(f"""v_mul_f32 {ta}, {f2u(float(p))}, {al}
            v_mul_f32 {tb_}, {f2u(float(p))}, {be}
            v_exp_f32 {ta}, {ta}
            v_fract_f32 {tb_}, {tb_}
            v_cos_f32 {w[0]}, {tb_}
            v_sin_f32 {w[1]}, {tb_}
            v_mul_f32 {w[0]}, {ta}, {w[0]}
            v_mul_f32 {w[1]}, {ta}, {w[1]}
            v_sub_f32 {w[2]}, 0, {w[1]}""")
        for p in (2, 4):
            cmul(W[p], W[p//2], W[p//2]); G(f"v_sub_f32 {W[p][2]}, 0, {W[p][1]}")
        r = pk[pki[0] % 4]; pki[0] += 1
        G(f"v_mov_b32 {r}, 0x3f80\nds_write_b32 {vKW}, {r} offset:0")
        put([1], W[8], False)
        cur = W[8]
        for j in range(2, 32):
            nx = xa if cur is not xa else xb
            cmul(nx, cur, W[8]); put([j], nx, False); cur = nx
        for ks in range(8): G(f"ds_read_b128 {ff.sub(4*ks,4)}, {vKR} offset:{32*ks}")
        base = (cr, ci); put(rows[0], base, True)
        def chain(b, hi0, step, n):
            cur = b
            for k in range(1, n):
                nx = xa if cur is not xa else xb
                cmul(nx, cur, W[step]); put(rows[hi0 + step*k], nx, True); cur = nx
        chain(base, 0, 1, 9)
        for q in range(1, 8):
            nb = xc if base is not xc else xd
            cmul(nb, base, W[256]); base = nb
            put(rows[256*q], base, True)
            if q == 1: chain(base, 256, 2, 5)
            elif q < 4: chain(base, 256*q, 4, 3)
            else: chain(base, 256*q, 8, 2)
        for ks in range(8): G(f"ds_read_b128 {fe.sub(4*ks,4)}, {vKR} offset:{32*ks}")
        for ks in range(8):
            c = "0" if (st_ == 0 and ks == 0) else str(kacc)
            G(f"v_mfma_f32_32x32x16_bf16 {kacc}, {fe.sub(4*ks,4)}, {ff.sub(4*ks,4)}, {c}")
    vKX = V(); e0, e1 = V(4), V(4); sel = [V(), V()]
    k = kacc
    G(f"""v_lshlrev_b32 {ta}, 4, {vL}
    v_sub_u32 {vKX}, {4080-3072}, {ta}
    v_add_u32 {vKX}, {sKB}, {vKX}
    v_cmp_eq_u32 vcc, 0, {vL}
    v_cndmask_b32 {ta}, 0, {vDsk}, vcc
    v_and_b32 {tb_}, 1, {vL}
    v_add_f32 {k[0]}, {k[0]}, {ta}
    v_cmp_eq_u32 vcc, 0, {tb_}
    v_cndmask_b32 {sel[0]}, {k[13]}, {k[12]}, vcc
    v_cndmask_b32 {sel[1]}, {k[15]}, {k[14]}, vcc""")
    seqs = [[k[i] for i in range(9)],
            [k[9]]*3 + [k[10]]*3 + [k[11]]*3,
            [k[12]]*4 + [sel[0]] + [k[13]]*4,
            [k[14]]*4 + [sel[1]] + [k[15]]*4]
    for Pi, q in enumerate(seqs):
        for d in range(4): G(f"v_cvt_pk_bf16_f32 {e0[d]}, {q[7-2*d]}, {q[6-2*d]}")
        G(f"ds_write_b128 {vKX}, {e0} offset:{3072 - 1024*Pi}")
        for d in range(4): G(f"v_cvt_pk_bf16_f32 {e1[d]}, {q[8-2*d]}, {q[7-2*d]}")
        G(f"ds_write_b128 {vKX}, {e1} offset:{4160 + 3072 - 1024*Pi}")
    G(f"""v_cvt_pk_bf16_f32 {ta}, {k[0]}, {vZero}
    v_cmp_eq_u32 vcc, 0, {vL}
    v_min_u32 {tb_}, 7, {vL}
    v_cndmask_b32 {ta}, 0, {ta}, vcc
    v_lshl_add_u32 {tb_}, {tb_}, 2, {sKB}
    ds_write_b32 {tb_}, {vZero} offset:4096
    ds_write_b32 {tb_}, {ta} offset:{4160+4096}""")
    NSL = 13
    cuts = [0] + [n_early + ((len(side) - n_early) * i) // (NSL - 1) for i in range(NSL)]
    for it in range(14):
        sl = side[cuts[it]:cuts[it+1]] if it < NSL else []
        if it == 12:
            P(f"s_mov_b32 {srdXT[2]}, 4\nbuffer_load_dword {vE}, {vZero}, {srdXT}, 0 offen sc1")
        P.extend(merge(dma_tile(it + 2), sl))
        if it == 2: P("@waitvm early")
        if it == 3:
            P(f"""s_cmp_eq_u32 {sLW}, 0
            s_cselect_b32 {sT}, 4, 0
            s_mov_b32 {srdXT[0]}, {pDBG[0]}
            s_mov_b32 {srdXT[1]}, {pDBG[1]}
            s_mov_b32 {srdXT[2]}, {sT}
            v_mov_b32 {vE}, 1
            s_mov_b64 exec, 1
            buffer_atomic_add {vE}, {vZero}, {srdXT}, 0 offen sc1
            s_mov_b64 exec, -1""")
        if it == 12:
            P(f"v_cmp_gt_u32 vcc, 256, {vE}\ns_cbranch_vccnz L_eslow\nL_eback:")
            OOL = Prog(); OOL("L_eslow:"); poll_global(OOL, vZero, vE, 256, srdXT, 'gt'); OOL("s_branch L_eback")
        P(f"@waitvm t{it+1}\ns_barrier")
    stamp(P, 2)
    V.reset(kmark)
    vUD, vWO, vWO2 = V(), V(), V()
    z4 = V(4)
    P(f"""s_lshl_b32 {sT}, s2, 14
    s_lshl_b32 {sT2}, {sLW}, 4
    s_add_u32 {sT}, {sT}, {sT2}
    v_lshl_add_u32 {vUD}, {vL}, 6, {sT}
    s_add_u32 m0, {sUB}, 512""")
    for i in range(4):
        P(f"s_mov_b32 {sBase}, {UT + 3072*i}")
        P(f"buffer_load_dwordx4 {vUD}, {srdWS}, {sBase} offen offset:{1024*i} sc1 lds", "uT")
    P(f"""v_lshrrev_b32 {vT}, 3, {vL}
    v_lshlrev_b32 {vWO2}, 11, {vT}
    v_lshrrev_b32 {vT}, 4, {vL}
    v_lshlrev_b32 {vT}, 1, {vT}
    v_and_b32 {vT2}, 7, {vL}
    v_xor_b32 {vT}, {vT}, {vT2}
    v_lshl_add_u32 {vWO2}, {vT}, 4, {vWO2}
    s_lshl_b32 {sT}, {sCT}, 7
    v_add_u32 {vWO2}, {sT}, {vWO2}
    s_lshl_b32 {sT}, {sLW}, 15
    v_add_u32 {vWO}, {sT}, {vWO2}
    s_lshl_b32 {sM0A}, {sLW}, 11""")
    def dma_wo(kt):
        P(f"""s_add_u32 m0, {sM0A}, {wo_addr(kt)}
        s_mov_b32 {sBase}, {kt*131072}
        buffer_load_dwordx4 {vWO}, {srdWO}, {sBase} offen lds
        s_mov_b32 {sBase}, {kt*131072 + 16384 - 1024}
        buffer_load_dwordx4 {vWO}, {srdWO}, {sBase} offen offset:1024 lds""", "wo")
    dma_wo(0); dma_wo(1)
    P(f"""v_lshl_add_u32 {vT}, {vL}, 3, {sUB}
    v_mov_b32 {z4[0]}, 0
    v_mov_b32 {z4[1]}, 0
    ds_write_b64 {vT}, {z4.sub(0,2)}""")
    P("@waitvm t15\n@waitlg\ns_barrier")
    for kt in range(2, 7): dma_wo(kt)
    vU = V(); vTA = [V() for _ in range(4)]; vLF = V(); vOne = V()
    P(f"""v_and_b32 {vT}, 15, {vL}
    v_lshrrev_b32 {vT2}, 4, {vL}
    v_lshlrev_b32 {vU}, 5, {vT}
    v_lshl_add_u32 {vU}, {vT2}, 4, {vU}
    s_add_u32 {sT}, {sUB}, 480
    v_add_u32 {vU}, {sT}, {vU}
    v_lshlrev_b32 {vTA[0]}, 4, {vT2}
    v_lshrrev_b32 {vT2}, 1, {vT}
    v_lshlrev_b32 {vT2}, 2, {vT2}
    v_sub_u32 {vTA[0]}, {vTA[0]}, {vT2}
    v_and_b32 {vT}, 1, {vT}
    v_xor_b32 {vT}, 1, {vT}
    v_mul_u32_u24 {vT}, {4160+4}, {vT}
    v_add_u32 {vTA[0]}, {vTA[0]}, {vT}
    s_add_u32 {sT}, {sKB}, {4*(1015-128)}
    v_add_u32 {vTA[0]}, {sT}, {vTA[0]}
    v_subrev_u32 {vTA[1]}, 1024, {vTA[0]}
    v_subrev_u32 {vTA[2]}, 2048, {vTA[0]}
    v_subrev_u32 {vTA[3]}, 3072, {vTA[0]}
    s_lshl_b32 {sT}, {sLW}, 2
    s_add_u32 {sT}, {sT}, {LF}
    v_mov_b32 {vLF}, {sT}
    v_mov_b32 {vOne}, 1
    s_barrier""")
    for kt in range(7, 12): dma_wo(kt)
    tf = [[V(4) for _ in range(8)], [xr.sub(4*i, 4) for i in range(8)]]
    uf = [[V(4) for _ in range(8)], [xo.sub(4*i, 4) for i in range(8)]]
    cacc = [V(4) for _ in range(8)]
    def creads(b):
        out = []
        for i in range(8):
            off = 0 if i & 1 else 128
            out.append(L(f"ds_read_b128 {uf[b][i]}, {vU} offset:{512*i}"))
            out.append(L(f"ds_read2_b32 {tf[b][i].sub(0,2)}, {vTA[i>>1]} offset0:{off} offset1:{off+1}"))
            out.append(L(f"ds_read2_b32 {tf[b][i].sub(2,2)}, {vTA[i>>1]} offset0:{off+2} offset1:{off+3}"))
        out.append(L("\n".join(f"v_subrev_u32 {r}, 64, {r}" for r in [vU] + vTA)))
        return out
    def cmf(b):
        prs = sorted([(i, j) for i in range(8) for j in range(8) if i + j <= 7], key=lambda p: (max(p), p))
        return [L(f"{MF} {cacc[i+j]}, {tf[b][i]}, {uf[b][j]}, {cacc[i+j]}") for i, j in prs]
    for c in cacc:
        for r in range(4): P(f"v_mov_b32 {c[r]}, 0")
    P("@waitvm uT")
    for g in creads(0): P.extend(g)
    P("s_barrier")
    stamp(P, 3)
    P(f"s_mov_b32 {sCnt}, 0")
    P.loop_begin("L_conv")
    for b in range(2):
        m = cmf(b); rd = creads(b ^ 1)
        P.extend(merge(m[:28], rd) + [x for g in m[28:] for x in g])
    P(f"""s_waitcnt vmcnt(0)
    ds_write_b32 {vLF}, {vOne}
    s_add_u32 {sCnt}, {sCnt}, 1
    s_cmp_lt_u32 {sCnt}, 4
    s_cbranch_scc1 L_conv""")
    P.loop_end()
    stamp(P, 4)
    P(f"""@waitlg
    s_add_u32 {sT}, {sLW}, 12
    s_lshl_b32 {sT}, {sT}, 17""")
    for j in range(8):
        if j % 4 == 0: P(f"s_add_u32 m0, {sKB}, {j*1024}")
        P(f"s_add_u32 {sBase}, {sT}, {j*16384 - (j%4)*1024}")
        P(f"buffer_load_dwordx4 {vWO2}, {srdWO}, {sBase} offen offset:{(j%4)*1024} lds", "wol")
    P(f"""v_and_b32 {vT}, 15, {vL}
    v_lshlrev_b32 {vT}, 4, {vT}
    v_bfe_u32 {vT2}, {vL}, 4, 1
    v_lshl_add_u32 {vT}, {vT2}, 9, {vT}
    v_lshrrev_b32 {vT2}, 5, {vL}
    v_lshl_add_u32 {vT}, {vT2}, 8, {vT}
    s_lshl_b32 {sT}, {sCH}, 12
    s_add_u32 {sT}, {sT}, {AT}""")
    for Pi in range(4):
        d = tf[0][Pi]; a0, a1 = cacc[2*Pi], cacc[2*Pi+1]
        P(f"""v_cvt_pk_bf16_f32 {d[0]}, {a0[0]}, {a0[1]}
        v_cvt_pk_bf16_f32 {d[1]}, {a0[2]}, {a0[3]}
        v_cvt_pk_bf16_f32 {d[2]}, {a1[0]}, {a1[1]}
        v_cvt_pk_bf16_f32 {d[3]}, {a1[2]}, {a1[3]}
        v_permlane16_swap_b32 {d[0]}, {d[2]}
        v_permlane16_swap_b32 {d[1]}, {d[3]}
        buffer_store_dwordx4 {d}, {vT}, {srdWS}, {sT} offen offset:{1024*Pi} sc1""")
    vAT = [V(), V()]
    P(f"""v_mov_b32 {vT2}, 2
    @waitvm wol
    ds_write_b32 {vLF}, {vT2}
    s_lshl_b32 {sT}, {sCT}, 2
    s_add_u32 {sT}, {sT}, {sLW}
    s_lshl_b32 {sT2}, {sT}, 4
    v_and_b32 {vT}, 15, {vL}
    v_add_u32 {vT}, {sT2}, {vT}
    v_mul_u32_u24 {vT}, {FS}, {vT}
    v_add_u32 {vT}, {F3}, {vT}
    v_lshrrev_b32 {vT2}, 4, {vL}
    v_lshlrev_b32 {vAT[0]}, 12, {vT2}
    v_and_b32 {vAT[1]}, 7, {vL}
    v_xor_b32 {vT2}, {vT2}, {vAT[1]}
    v_lshl_add_u32 {vAT[0]}, {vT2}, 4, {vAT[0]}
    v_bfe_u32 {vT2}, {vL}, 3, 1
    v_lshl_add_u32 {vAT[0]}, {vT2}, 8, {vAT[0]}
    s_lshl_b32 {sT}, {sT}, 16
    s_lshr_b32 {sT2}, {sMT2}, 1
    s_lshl_b32 {sT2}, {sT2}, 9
    s_add_u32 {sT}, {sT}, {sT2}
    s_and_b32 {sT2}, {sMT2}, 1
    s_lshl_b32 {sT2}, {sT2}, 7
    s_add_u32 {sT}, {sT}, {sT2}
    v_add_u32 {vAT[0]}, {sT}, {vAT[0]}
    v_xor_b32 {vAT[1]}, 64, {vAT[0]}
    s_waitcnt vmcnt(0)
    s_mov_b64 exec, 1
    buffer_store_dword {vOne}, {vF3}, {srdWS}, 0 offen sc1
    s_mov_b64 exec, -1""")
    stamp(P, 5)
    poll_global(P, vT, vE, 1, srdWS)
    stamp(P, 6)
    P(f"s_add_u32 m0, {sUB}, 512")
    for i in range(4):
        P(f"s_mov_b32 {sBase}, {AT + 16384*i - 1024*i}")
        P(f"buffer_load_dwordx4 {vAT[i&1]}, {srdWS}, {sBase} offen offset:{1024*i} sc1 lds")
    P(f"""v_mov_b32 {vT2}, 3
    s_waitcnt vmcnt(0)
    ds_write_b32 {vLF}, {vT2}
    s_waitcnt lgkmcnt(0)""")
    stamp(P, 7)
    dump_stamps(P, vT, z4, 1)
    P("s_endpgm")
    loader, vhiL, shiL = P, V.hi, S.hi

    P = Prog()
    S.reset(smark); V = Alloc('v', 1, 256)
    srdOUT = S(4)
    sWM, sWN, sHD, sIt, sStage, sDelta, sXS, sXP, sBase = [S() for _ in range(9)]
    sPC = S(2)
    alloc_stamps(12)
    vT, vT2, vZero, vOne, vF1, vF2 = [V() for _ in range(6)]
    vRA = [V(), V()]; vRB = [V() for _ in range(4)]
    fa = [[V(4) for _ in range(4)] for _ in range(2)]
    fb = [[V(4) for _ in range(6)] for _ in range(2)]
    acc = [[V(4) for _ in range(6)] for _ in range(4)]
    P("L_compute:")
    role_now[0] = 'c'
    gx = [fa[0][i] for i in range(4)]; gw = [fa[1][0], fa[1][1]]
    P(f"""s_lshr_b32 {sWM}, {sW}, 1
    s_and_b32 {sWN}, {sW}, 1
    s_lshl_b32 {sHD}, {sHP}, 1
    s_add_u32 {sHD}, {sHD}, {sWN}
    s_lshl_b32 {sT}, {sMT}, 1
    s_add_u32 {sT}, {sT}, {sWM}
    s_lshl_b32 {sT}, {sT}, 5
    s_add_u32 {sT3}, {sT}, {sHD}
    s_lshl_b32 {sT}, {sT3}, 12
    v_lshlrev_b32 {vT2}, 4, {vL}
    v_add_u32 {vT}, {sT}, {vT2}
    s_waitcnt lgkmcnt(0)
    global_load_dwordx4 {gx[0]}, {vT}, {pX}
    global_load_dwordx4 {gx[1]}, {vT}, {pX} offset:1024
    global_load_dwordx4 {gx[2]}, {vT}, {pX} offset:2048
    global_load_dwordx4 {gx[3]}, {vT}, {pX} offset:3072
    global_load_dwordx4 {gw[0]}, {vT2}, {pGW}
    global_load_dwordx4 {gw[1]}, {vT2}, {pGW} offset:1024""")
    if o['codepf']:
        P(f"""s_getpc_b64 {sPC}
        L_pcref:
        s_sub_u32 {sPC[0]}, {sPC[0]}, L_pcref-{KNAME}
        s_subb_u32 {sPC[1]}, {sPC[1]}, 0
        s_lshr_b32 {sT}, s2, 3
        s_lshl_b32 {sT}, {sT}, 2
        s_add_u32 {sT}, {sT}, {sW}
        s_lshl_b32 {sT}, {sT}, 8
        v_lshl_add_u32 {vT}, {vL}, 2, {sT}
        v_min_u32 {vT}, L_codeend-{KNAME}-4, {vT}
        global_load_dword {fb[0][0][0]}, {vT}, {sPC}""")
    srd(P, srdWS, pWS, 0x10000000); srd(P, srdOUT, pOUT, 4*MB)
    P(f"""s_mul_i32 {sT}, {sT3}, {FS}
    s_add_u32 {sT}, {sT}, {F2}
    v_mov_b32 {vF2}, {sT}
    s_lshl_b32 {sT}, {sHD}, 1
    s_add_u32 {sT}, {sT}, {sWM}
    s_lshl_b32 {sT}, {sT}, 4
    s_add_u32 {sT}, {sT}, {sMT}
    s_mul_i32 {sT}, {sT}, {FS}
    s_add_u32 {sT}, {sT}, {F1}
    v_mov_b32 {vF1}, {sT}
    v_mov_b32 {vZero}, 0
    v_mov_b32 {vOne}, 1
    s_mov_b64 exec, 1
    buffer_store_dword {vZero}, {vF1}, {srdWS}, 0 offen sc1
    buffer_store_dword {vZero}, {vF2}, {srdWS}, 0 offen sc1
    s_mov_b64 exec, -1""")
    P(f"""s_lshl_b32 {sT}, {sWM}, 13
    v_and_b32 {vT}, 15, {vL}
    v_lshl_add_u32 {vRA[0]}, {vT}, 7, {sT}
    v_bfe_u32 {vT}, {vL}, 1, 3
    v_lshrrev_b32 {vT2}, 4, {vL}
    v_xor_b32 {vT}, {vT}, {vT2}
    v_lshl_add_u32 {vRA[0]}, {vT}, 4, {vRA[0]}
    v_xor_b32 {vRA[1]}, 64, {vRA[0]}
    v_lshlrev_b32 {vRB[0]}, 10, {vT2}
    v_bfe_u32 {vT}, {vL}, 2, 2
    v_lshl_add_u32 {vRB[0]}, {vT}, 7, {vRB[0]}
    s_lshl_b32 {sT}, {sWN}, 1
    v_bfe_u32 {vT}, {vL}, 3, 2
    v_xor_b32 {vT}, {sT}, {vT}
    v_lshl_add_u32 {vRB[0]}, {vT}, 5, {vRB[0]}
    v_and_b32 {vT}, 3, {vL}
    v_lshl_add_u32 {vRB[0]}, {vT}, 3, {vRB[0]}
    v_add_u32 {vRB[0]}, {ASZ}, {vRB[0]}
    v_xor_b32 {vRB[1]}, 32, {vRB[0]}
    s_lshl_b32 {sT}, {sWM}, 5
    v_xor_b32 {vRB[2]}, {sT}, {vRB[0]}
    v_xor_b32 {vRB[3]}, 32, {vRB[2]}
    s_mov_b32 {sIt}, 0
    s_mov_b32 {sStage}, 0""")
    for row in acc:
        for t in row:
            for r in range(4): P(f"v_mov_b32 {t[r]}, 0")
    g2 = fb[1][0]
    P(f"v_mov_b32 {g2[0]}, 0\nv_mov_b32 {g2[1]}, 0")
    for r in range(2):
        for h in range(2):
            for d in range(4): P(f"v_dot2c_f32_bf16 {g2[r]}, {gx[2*r+h][d]}, {gw[h][d]}")
    for ctl in ("row_shr:1 row_mask:0xf", "row_shr:2 row_mask:0xf", "row_shr:4 row_mask:0xf", "row_shr:8 row_mask:0xf", "row_bcast:15 row_mask:0xa", "row_bcast:31 row_mask:0xc"):
        for r in range(2): P(f"v_add_f32_dpp {g2[r]}, {g2[r]}, {g2[r]} {ctl} bank_mask:0xf")
    for r in range(2): bf16r(P, g2[r], g2[r])
    for r in range(2): P(f"v_mul_f32 {g2[r]}, {LOG2E ^ 0x80000000}, {g2[r]}")
    for r in range(2): P(f"v_exp_f32 {g2[r]}, {g2[r]}")
    for r in range(2): P(f"v_add_f32 {g2[r]}, 1.0, {g2[r]}")
    for r in range(2): P(f"v_rcp_f32 {g2[r]}, {g2[r]}")
    for r in range(2): bf16r(P, g2[r], g2[r])
    P(f"""s_lshl_b32 {sT}, {sT3}, 3
    s_add_u32 {sT}, {sT}, {GG}
    v_mov_b32 {vT}, {sT}
    s_mov_b32 {sEx[0]}, 0
    s_mov_b32 {sEx[1]}, 0x80000000
    s_mov_b64 exec, {sEx}
    buffer_store_dwordx2 {g2.sub(0,2)}, {vT}, {srdWS}, 0 offen sc1
    s_mov_b64 exec, -1
    s_barrier""")
    def reads(ks, buf):
        ra = [L(f"ds_read_b128 {fa[buf][mi]}, {vRA[ks]} offset:{mi*2048}") for mi in range(4)]
        rb = []
        for ni in range(6):
            ad = vRB[(ni & 1) + (2 if ni >= 4 else 0)]
            for t in range(2):
                rb.append(L(f"ds_read_b64_tr_b16 {fb[buf][ni].sub(2*t,2)}, {ad} offset:{(ni>>1)*8192 + ks*4096 + t*512}"))
        return ra[:1] + rb + ra[1:]
    def mfmas(buf):
        out = []
        for mi in range(4):
            for n in range(6):
                ni = n if mi % 2 == 0 else 5 - n
                a_, b_ = (fb[buf][ni], fa[buf][mi]) if ni < 2 else (fa[buf][mi], fb[buf][ni])
                out.append(L(f"{MF} {acc[mi][ni]}, {a_}, {b_}, {acc[mi][ni]}"))
        return out
    for g in reads(0, 0): P.extend(g)
    stamp(P, 1)
    P("s_waitcnt lgkmcnt(0)")
    P.loop_begin("L_gemm")
    m0_, m1_ = mfmas(0), mfmas(1)
    adv = L(f"""s_add_u32 {sStage}, {sStage}, 1
    s_mov_b32 {sDelta}, {SSZ}
    s_cmp_eq_u32 {sStage}, 3
    s_cselect_b32 {sDelta}, {(-2*SSZ) & 0xffffffff}, {sDelta}
    s_cselect_b32 {sStage}, 0, {sStage}""")
    adv2 = [L(f"v_add_u32 {r}, {sDelta}, {r}") for r in vRA + vRB]
    P.extend(merge(m0_[:16], reads(1, 1)))
    P.extend(merge(m0_[16:18], [[x] for x in adv]))
    P.extend(merge(m0_[18:], adv2))
    P("s_waitcnt lgkmcnt(0)")
    P.extend(m1_[0] + m1_[1])
    P("s_waitcnt vmcnt(1)\ns_barrier")
    P.extend(merge(m1_[2:18], reads(0, 0)))
    P.extend(merge(m1_[18:], [L(f"s_add_u32 {sIt}, {sIt}, 1"), L(f"s_cmp_lt_u32 {sIt}, 16")]))
    P("s_waitcnt lgkmcnt(0)\ns_cbranch_scc1 L_gemm")
    P.loop_end()
    stamp(P, 2)
    if o['prio']: P(f"s_setprio {o['prio']}")
    V.reset(fa[0][0].idx)
    fr_end = acc[0][0].idx
    tmp = [V() for _ in range(8)]
    pkf = [[V(4), V(4)] for _ in range(2)]; vf = [[V(4), V(4)] for _ in range(2)]
    kvt = [[V(4), V(4)] for _ in range(2)]; zt = [V(4), V(4)]
    ones = V(4); sEps = S(); sL2E = S()
    assert V.next <= fr_end, V.next
    V.next = acc[3][5].idx + 4
    def phi(tile, dst2):
        t0 = tmp[0:4]; t1 = tmp[4:8]
        for j in range(4): P(f"v_mul_f32 {t0[j]}, {sL2E}, {tile[j]}")
        for j in range(4): P(f"v_exp_f32_e64 {t0[j]}, {t0[j]} clamp")
        for j in range(4): P(f"v_max_f32 {t1[j]}, {sEps}, {tile[j]}")
        for j in range(4): P(f"v_add_f32 {t0[j]}, {t0[j]}, {t1[j]}")
        P(f"v_cvt_pk_bf16_f32 {dst2[0]}, {t0[0]}, {t0[1]}\nv_cvt_pk_bf16_f32 {dst2[1]}, {t0[2]}, {t0[3]}")
    P(f"s_mov_b32 {sEps}, 0x358637bd\ns_mov_b32 {sL2E}, {LOG2E}")
    for r in range(4): P(f"v_mov_b32 {ones[r]}, 0x3f803f80")
    P(f"""s_lshl_b32 {sXS}, {sW}, 11
    s_add_u32 {sXS}, {sXS}, {XS012}
    s_cmp_eq_u32 {sW}, 3
    s_cselect_b32 {sXS}, {XS3}, {sXS}
    s_xor_b32 {sT}, {sW}, 2
    s_lshl_b32 {sXP}, {sT}, 11
    s_add_u32 {sXP}, {sXP}, {XS012}
    s_cmp_eq_u32 {sT}, 3
    s_cselect_b32 {sXP}, {XS3}, {sXP}""")
    for p in range(2):
        for e in range(2):
            for h in range(2):
                t = acc[2*p+h][4+e]
                P(f"v_cvt_pk_bf16_f32 {vf[p][e][2*h]}, {t[0]}, {t[1]}\nv_cvt_pk_bf16_f32 {vf[p][e][2*h+1]}, {t[2]}, {t[3]}")
        for d in range(2):
            for h in range(2): phi(acc[2*p+h][2+d], pkf[p][d].sub(2*h, 2))
            for e in (1, 0): P(f"{MF} {kvt[d][e]}, {pkf[p][d]}, {vf[p][e]}, {kvt[d][e] if p else 0}")
            P(f"{MF} {zt[d]}, {pkf[p][d]}, {ones}, {zt[d] if p else 0}")
    vXS, vXP, vPA, vZA = V(), V(), V(), V()
    P(f"""v_lshl_add_u32 {vXS}, {vL}, 4, {sXS}
    v_lshl_add_u32 {vXP}, {vL}, 4, {sXP}
    s_lshl_b32 {sT}, {sHD}, 1
    s_add_u32 {sT}, {sT}, {sWM}
    s_lshl_b32 {sT2}, {sT}, 14
    s_add_u32 {sT2}, {sT2}, {PART}
    v_lshl_add_u32 {vPA}, {vL}, 4, {sT2}
    s_lshl_b32 {sT}, {sT}, 4
    s_add_u32 {sT}, {sT}, {sMT}
    s_lshl_b32 {sT}, {sT}, 6
    s_add_u32 {sT}, {sT}, {ZP}
    v_add_u32 {vZA}, {sT}, {vL}
    s_lshl_b32 {sBase}, {sMT}, 10
    ds_write_b128 {vXS}, {kvt[0][1]}
    ds_write_b128 {vXS}, {kvt[1][1]} offset:1024""")
    zf = pkf[0][0]; pf = pkf[0][1]
    P(f"""v_cvt_pk_bf16_f32 {zf[0]}, {zt[0][0]}, {zt[0][1]}
    v_cvt_pk_bf16_f32 {zf[1]}, {zt[0][2]}, {zt[0][3]}
    v_cvt_pk_bf16_f32 {zf[2]}, {zt[1][0]}, {zt[1][1]}
    v_cvt_pk_bf16_f32 {zf[3]}, {zt[1][2]}, {zt[1][3]}
    s_mov_b32 {sEx[0]}, 0x00010001
    s_mov_b32 {sEx[1]}, 0x00010001
    s_waitcnt lgkmcnt(0)
    s_barrier
    ds_read_b128 {kvt[0][1]}, {vXP}
    ds_read_b128 {kvt[1][1]}, {vXP} offset:1024
    s_mov_b64 exec, {sEx}
    buffer_store_dwordx4 {zf}, {vZA}, {srdWS}, 0 offen sc1
    s_mov_b64 exec, -1""")
    for d in range(2):
        for j in range(4): P(f"v_add_f32 {kvt[d][0][j]}, {kvt[d][0][j]}, {kvt[d][1][j]}")
        P(f"v_cvt_pk_bf16_f32 {pf[2*d]}, {kvt[d][0][0]}, {kvt[d][0][1]}\nv_cvt_pk_bf16_f32 {pf[2*d+1]}, {kvt[d][0][2]}, {kvt[d][0][3]}")
    P(f"buffer_store_dwordx4 {pf}, {vPA}, {srdWS}, {sBase} offen sc1")
    stamp(P, 3)
    pq = [V(4) for _ in range(4)]
    for tt in range(2):
        for d in range(2): phi(acc[tt][d], pq[tt].sub(2*d, 2))
    P(f"""s_waitcnt vmcnt(0)
    s_mov_b64 exec, 1
    buffer_store_dword {vOne}, {vF1}, {srdWS}, 0 offen sc1
    s_mov_b64 exec, -1""")
    stamp(P, 4)
    for tt in range(2, 4):
        for d in range(2): phi(acc[tt][d], pq[tt].sub(2*d, 2))
    selr = V(6); vP1 = V()
    P(f"""v_and_b32 {vT}, 15, {vL}
    v_lshrrev_b32 {vT2}, 4, {vL}
    v_lshlrev_b32 {vT2}, 2, {vT2}
    v_sub_u32 {vT}, {vT}, {vT2}
    v_mov_b32 {selr[0]}, 0
    v_mov_b32 {selr[1]}, 0
    v_mov_b32 {selr[4]}, 0
    v_mov_b32 {selr[5]}, 0
    v_mov_b32 {tmp[0]}, 0x3f80
    v_mov_b32 {tmp[1]}, 0x3f800000
    v_cmp_eq_u32 vcc, 0, {vT}
    v_cndmask_b32 {selr[2]}, 0, {tmp[0]}, vcc
    v_cmp_eq_u32 vcc, 1, {vT}
    v_cndmask_b32 {selr[2]}, {selr[2]}, {tmp[1]}, vcc
    v_cmp_eq_u32 vcc, 2, {vT}
    v_cndmask_b32 {selr[3]}, 0, {tmp[0]}, vcc
    v_cmp_eq_u32 vcc, 3, {vT}
    v_cndmask_b32 {selr[3]}, {selr[3]}, {tmp[1]}, vcc
    s_lshl_b32 {sT}, {sHD}, 5
    v_and_b32 {vT}, 31, {vL}
    v_add_u32 {vT}, {sT}, {vT}
    v_mul_u32_u24 {vP1}, {FS}, {vT}
    v_add_u32 {vP1}, {F1}, {vP1}
    s_lshl_b32 {sT}, {sHD}, 11
    s_add_u32 {sT}, {sT}, {ZP}
    v_and_b32 {vT}, 15, {vL}
    v_lshl_add_u32 {vZA}, {vT}, 6, {sT}
    v_lshrrev_b32 {vT}, 4, {vL}
    v_lshl_add_u32 {vZA}, {vT}, 4, {vZA}""")
    poll_global(P, vP1, vT, 1, srdWS)
    stamp(P, 5)
    parts = [R('v', acc[0][0].idx + 4*i, 4) for i in range(16)]
    zl = [R('v', acc[0][0].idx + 64 + 4*i, 4) for i in range(2)]
    zs = R('v', acc[0][0].idx + 72, 8)
    for i in range(2): P(f"buffer_load_dwordx4 {zl[i]}, {vZA}, {srdWS}, 0 offen offset:{1024*i} sc1")
    for p in range(16):
        if p % 4 == 0: P(f"s_mov_b32 {sBase}, {p*1024}")
        P(f"buffer_load_dwordx4 {parts[p]}, {vPA}, {srdWS}, {sBase} offen offset:{(p%4)*1024} sc1")
    for d in range(4):
        P(f"""v_lshlrev_b32 {zs[2*d]}, 16, {zl[0][d]}
        v_and_b32 {zs[2*d+1]}, 0xffff0000, {zl[0][d]}
        v_lshlrev_b32 {tmp[0]}, 16, {zl[1][d]}
        v_and_b32 {tmp[1]}, 0xffff0000, {zl[1][d]}
        v_add_f32 {zs[2*d]}, {zs[2*d]}, {tmp[0]}
        v_add_f32 {zs[2*d+1]}, {zs[2*d+1]}, {tmp[1]}""")
    for sh in (8, 4, 2, 1):
        for j in range(8): P(f"v_add_f32_dpp {zs[j]}, {zs[j]}, {zs[j]} row_ror:{sh} row_mask:0xf bank_mask:0xf")
    zb = zt[0]
    for d in range(4): P(f"v_cvt_pk_bf16_f32 {zb[d]}, {zs[2*d]}, {zs[2*d+1]}")
    sm = [kvt[0][0], kvt[1][0]]
    for p in range(16):
        P(f"{MF} {sm[0]}, {selr.sub(2,4)}, {parts[p]}, {sm[0] if p else 0}")
        P(f"{MF} {sm[1]}, {selr.sub(0,4)}, {parts[p]}, {sm[1] if p else 0}")
    vS3, vS3F, vOA = V(), V(), V()
    P(f"""s_lshl_b32 {sT}, {sW}, 10
    s_add_u32 {sT}, {sT}, {S3B}
    v_lshl_add_u32 {vS3}, {vL}, 4, {sT}
    s_lshl_b32 {sT}, {sW}, 2
    s_add_u32 {sT}, {sT}, {S3F}
    v_mov_b32 {vS3F}, {sT}
    v_cvt_pk_bf16_f32 {pf[0]}, {sm[0][0]}, {sm[0][1]}
    v_cvt_pk_bf16_f32 {pf[1]}, {sm[0][2]}, {sm[0][3]}
    v_cvt_pk_bf16_f32 {pf[2]}, {sm[1][0]}, {sm[1][1]}
    v_cvt_pk_bf16_f32 {pf[3]}, {sm[1][2]}, {sm[1][3]}
    ds_write_b128 {vS3}, {pf}
    ds_write_b32 {vS3F}, {vOne}
    v_xor_b32 {vS3F}, 8, {vS3F}
    s_lshl_b32 {sT}, {sWN}, 10
    s_add_u32 {sT}, {sT}, {S3B}
    v_lshl_add_u32 {vS3}, {vL}, 4, {sT}
    s_lshl_b32 {sT}, {sMT}, 1
    s_add_u32 {sT}, {sT}, {sWM}
    s_lshl_b32 {sT}, {sT}, 7
    s_add_u32 {sT}, {sT}, {sHD}
    s_lshl_b32 {sT}, {sT}, 10
    s_add_u32 {sT}, {sT}, {OF}
    v_lshl_add_u32 {vOA}, {vL}, 4, {sT}""")
    den = [R('v', acc[0][0].idx + 4*i, 4) for i in range(4)]
    for tt in range(4): P(f"{MF} {den[tt]}, {zb}, {pq[tt]}, 0")
    kf = [vf[0][0], vf[0][1]]
    l0, l1 = lab("s3"), lab("s3d")
    P(f"s_mov_b32 {sCnt}, 0")
    P.loop_begin(l0)
    P(f"""ds_read_b32 {vT}, {vS3F}
    ds_read_b128 {kf[0]}, {vS3}
    ds_read_b128 {kf[1]}, {vS3} offset:2048
    s_add_u32 {sCnt}, {sCnt}, 1
    s_cmp_gt_u32 {sCnt}, {SPIN_L}
    s_waitcnt lgkmcnt(0)
    s_cbranch_scc1 {l1}
    v_cmp_ne_u32 vcc, 1, {vT}
    s_cbranch_vccnz {l0}""")
    P.loop_end()
    P(f"{l1}:")
    num = [[R('v', acc[0][0].idx + 16 + 8*tt + 4*e, 4) for e in range(2)] for tt in range(4)]
    for tt in range(4):
        for e in range(2): P(f"{MF} {num[tt][e]}, {kf[e]}, {pq[tt]}, 0")
    for tt in range(4): P(f"v_add_f32 {den[tt][0]}, {sEps}, {den[tt][0]}")
    for tt in range(4): P(f"v_rcp_f32 {den[tt][0]}, {den[tt][0]}")
    for tt in range(4):
        for e in range(2):
            for j in range(4): P(f"v_mul_f32 {num[tt][e][j]}, {num[tt][e][j]}, {den[tt][0]}")
        of = pq[tt]
        for e in range(2):
            P(f"v_cvt_pk_bf16_f32 {of[2*e]}, {num[tt][e][0]}, {num[tt][e][1]}\nv_cvt_pk_bf16_f32 {of[2*e+1]}, {num[tt][e][2]}, {num[tt][e][3]}")
        P(f"s_mov_b32 {sBase}, {tt*32768}\nbuffer_store_dwordx4 {of}, {vOA}, {srdWS}, {sBase} offen sc1")
    stamp(P, 6)
    V.reset(vRA[0].idx)
    vWB = [V() for _ in range(4)]; vOL, vP2, vGA, vLFa = V(), V(), V(), V()
    vAR = [V(), V()]; gv = V(2); om = V(2); lf = V(4)
    wf = [[V(4) for _ in range(4)] for _ in range(2)]
    cc = [[V(4) for _ in range(4)] for _ in range(2)]
    RING = o['ring']
    keep_lo = pq[0].idx
    ring = [V(4) for _ in range(RING)]
    assert V.next <= keep_lo, (V.next, keep_lo)
    P(f"""v_lshrrev_b32 {vT}, 2, {vL}
    v_lshlrev_b32 {vWB[0]}, 7, {vT}
    v_bfe_u32 {vT}, {vL}, 3, 2
    v_lshl_add_u32 {vWB[0]}, {vT}, 5, {vWB[0]}
    v_and_b32 {vT}, 3, {vL}
    v_lshl_add_u32 {vWB[0]}, {vT}, 3, {vWB[0]}
    v_add_u32 {vWB[0]}, {wo_addr(0)}, {vWB[0]}
    v_xor_b32 {vWB[1]}, 32, {vWB[0]}
    v_xor_b32 {vWB[2]}, 64, {vWB[0]}
    v_xor_b32 {vWB[3]}, 96, {vWB[0]}
    s_lshl_b32 {sT}, {sMT2}, 2
    s_add_u32 {sT}, {sT}, {sW}
    s_lshl_b32 {sT2}, {sT}, 16
    s_add_u32 {sT2}, {sT2}, {OF}
    v_lshl_add_u32 {vOL}, {vL}, 4, {sT2}
    s_lshl_b32 {sT2}, {sT}, 7
    s_add_u32 {sT2}, {sT2}, {GG}
    v_and_b32 {vT}, 15, {vL}
    v_lshl_add_u32 {vGA}, {vT}, 2, {sT2}
    s_lshr_b32 {sT}, {sT}, 1
    s_lshl_b32 {sT}, {sT}, 5
    v_and_b32 {vT}, 31, {vL}
    v_add_u32 {vT}, {sT}, {vT}
    v_mul_u32_u24 {vP2}, {FS}, {vT}
    v_add_u32 {vP2}, {F2}, {vP2}
    v_mov_b32 {vLFa}, {LF}
    v_lshrrev_b32 {vT}, 2, {vL}
    v_lshlrev_b32 {vAR[0]}, 8, {vT}
    v_and_b32 {vT}, 7, {vT}
    s_lshl_b32 {sT}, {sW}, 1
    v_xor_b32 {vT}, {sT}, {vT}
    v_lshl_add_u32 {vAR[0]}, {vT}, 4, {vAR[0]}
    v_bfe_u32 {vT}, {vL}, 1, 1
    v_lshl_add_u32 {vAR[0]}, {vT}, 7, {vAR[0]}
    v_and_b32 {vT}, 1, {vL}
    v_lshl_add_u32 {vAR[0]}, {vT}, 3, {vAR[0]}
    v_add_u32 {vAR[0]}, {U0 + 512}, {vAR[0]}
    v_xor_b32 {vAR[1]}, 16, {vAR[0]}""")
    def wait_lf(level):
        l0, l1 = lab("lf"), lab("lfd")
        P(f"s_mov_b32 {sCnt}, 0")
        P.loop_begin(l0)
        P(f"""ds_read_b128 {lf}, {vLFa}
        s_add_u32 {sCnt}, {sCnt}, 1
        s_cmp_gt_u32 {sCnt}, {SPIN_L}
        s_waitcnt lgkmcnt(0)
        s_cbranch_scc1 {l1}
        v_min_u32 {lf[0]}, {lf[0]}, {lf[1]}
        v_min3_u32 {lf[0]}, {lf[0]}, {lf[2]}, {lf[3]}
        v_cmp_gt_u32 vcc, {level}, {lf[0]}
        s_cbranch_vccnz {l0}""")
        P.loop_end()
        P(f"{l1}:")
    P(f"""s_waitcnt vmcnt(0)
    s_mov_b64 exec, 1
    buffer_store_dword {vOne}, {vF2}, {srdWS}, 0 offen sc1
    s_mov_b64 exec, -1""")
    stamp(P, 7)
    wait_lf(1)
    def wreads(ks):
        kt, hh = ks >> 1, ks & 1
        base = wo_addr(0) if kt < 7 else (wo_addr(7) if kt < 12 else wo_addr(12))
        out = []
        for c in range(4):
            for t in range(2):
                out.append(L(f"ds_read_b64_tr_b16 {wf[ks&1][c].sub(2*t,2)}, {vWB[c]} offset:{wo_addr(kt) - base + hh*4096 + t*2048}"))
        return out
    for g in wreads(0): P.extend(g)
    poll_global(P, vP2, vT, 1, srdWS)
    stamp(P, 8)
    sO = [S(), S()]
    def oload(j):
        ks, tt = j >> 1, j & 1
        pre = f"s_mov_b32 {sO[tt]}, {tt*32768 + (ks & ~3)*1024}\n" if ks % 4 == 0 else ""
        return L(pre + f"buffer_load_dwordx4 {ring[j % RING]}, {vOL}, {srdWS}, {sO[tt]} offen offset:{(ks&3)*1024} sc1")
    for j in range(RING): P.extend(oload(j))
    for ks in range(32):
        m = [L(f"{MF} {cc[tt][c]}, {wf[ks&1][c]}, {ring[(2*ks+tt) % RING]}, {cc[tt][c] if ks else 0}") for tt in range(2) for c in range(4)]
        if ks + 1 in (14, 24):
            delta = wo_addr(7) - wo_addr(0) if ks + 1 == 14 else wo_addr(12) - wo_addr(7)
            for r in vWB: P(f"v_add_u32 {r}, {delta & 0xffffffff}, {r}")
        if ks + 1 == 24: wait_lf(2)
        if ks == 24: P(f"buffer_load_dword {gv[0]}, {vGA}, {srdWS}, 0 offen sc1\nbuffer_load_dword {gv[1]}, {vGA}, {srdWS}, 0 offen offset:64 sc1")
        rd = wreads(ks + 1) if ks < 31 else []
        for half in range(2):
            P.extend(merge(m[4*half:4*half+4], rd[4*half:4*half+4]))
            if 2*ks + half + RING < 64: P.extend(oload(2*ks + half + RING))
    stamp(P, 9)
    wait_lf(3)
    af = [[ring[2*tt + (c >> 1)].sub(2*(c & 1), 2) for c in range(4)] for tt in range(2)]
    for tt in range(2):
        for c in range(4): P(f"ds_read_b64_tr_b16 {af[tt][c]}, {vAR[tt]} offset:{c*USZ}")
    for tt in range(2):
        P(f"v_sub_f32 {om[tt]}, 1.0, {gv[tt]}"); bf16r(P, om[tt], om[tt])
    vOut = vOL
    P(f"""s_lshl_b32 {sT}, {sMT2}, 2
    s_add_u32 {sT}, {sT}, {sW}
    s_lshl_b32 {sT}, {sT}, 16
    s_lshl_b32 {sT2}, {sCT}, 7
    s_add_u32 {sT}, {sT}, {sT2}
    v_and_b32 {vT}, 15, {vL}
    v_lshl_add_u32 {vOut}, {vT}, 11, {sT}
    v_bfe_u32 {vT}, {vL}, 4, 1
    v_lshl_add_u32 {vOut}, {vT}, 5, {vOut}
    v_lshrrev_b32 {vT}, 5, {vL}
    v_lshl_add_u32 {vOut}, {vT}, 4, {vOut}""")
    tq = ring[4]
    for tt in range(2):
        for cp in range(2):
            d = ring[6 + 2*tt + cp]
            for q in range(2):
                c = 2*cp + q; t = cc[tt][c]; a2 = af[tt][c]
                P(f"""v_lshlrev_b32 {tq[0]}, 16, {a2[0]}
                v_and_b32 {tq[1]}, 0xffff0000, {a2[0]}
                v_lshlrev_b32 {tq[2]}, 16, {a2[1]}
                v_and_b32 {tq[3]}, 0xffff0000, {a2[1]}""")
                for j in range(4): P(f"v_mul_f32 {t[j]}, {om[tt]}, {t[j]}")
                for j in range(4): P(f"v_fmac_f32 {t[j]}, {gv[tt]}, {tq[j]}")
                P(f"v_cvt_pk_bf16_f32 {d[2*q]}, {t[0]}, {t[1]}\nv_cvt_pk_bf16_f32 {d[2*q+1]}, {t[2]}, {t[3]}")
            P(f"""v_permlane16_swap_b32 {d[0]}, {d[2]}
            v_permlane16_swap_b32 {d[1]}, {d[3]}
            s_mov_b32 {sBase}, {tt*32768}
            buffer_store_dwordx4 {d}, {vOut}, {srdOUT}, {sBase} offen offset:{64*cp} {o.get("outflags","")}""")
    stamp(P, 10)
    if stamps:
        P("s_waitcnt vmcnt(0)"); stamp(P, 11)
    dump_stamps(P, vT, lf, 0)
    P("L_end:\ns_endpgm\nL_codeend:")
    compute, vhiC, shiC = P, V.hi, S.hi

    hdr = open("gated_mix__ssm_conv_s4d__linear_attn_block__prompt.s.ref").read().split("; Override")[0] if o.get('hdr') else ""
    out = [hdr + "; @launch grid=(256,1,1) block=(512,1,1) lds=163840",
           '.amdgcn_target "amdgcn-amd-amdhsa--gfx950"', ".text", f".globl {KNAME}", ".p2align 8", f".type {KNAME},@function", f"{KNAME}:"]
    out += E.finalize() + loader.finalize() + OOL.finalize() + compute.finalize()
    out += ['.section .rodata,"a"', kernel_desc(KNAME, 256, 0, 102)]
    info = dict(vL=vhiL, vC=vhiC, sL=shiL, sC=shiC, nside=len(side))
    return "\n".join(out), info

if __name__ == "__main__":
    opts = dict(hdr=True); opts.update(eval(sys.argv[2]) if len(sys.argv) > 2 else {})
    txt, info = gen(stamps=opts.get('stamps', False), opts=opts)
    open(sys.argv[1], "w").write(txt)
    print(info)
```

```python
import main as M, re
from asm import kernel_desc
K = M.KNAME
TS = 150 << 20
def tiny_record(name, grid=1):
    return f"""
.globl {name}
.p2align 8
.type {name},@function
{name}:
    s_memrealtime s[8:9]
    s_cmp_ge_u32 s2, 1
    s_cbranch_scc1 L_tr_end
    s_load_dwordx2 s[4:5], s[0:1], 104
    s_waitcnt lgkmcnt(0)
    v_mov_b32 v1, {TS}
    v_mov_b32 v2, s8
    global_store_dword v1, v2, s[4:5]
    s_waitcnt vmcnt(0)
L_tr_end:
    s_endpgm
"""
def tiny_spin(name):
    return f"""
.globl {name}
.p2align 8
.type {name},@function
{name}:
    s_cmp_ge_u32 s2, 1
    s_cbranch_scc1 L_ts_end
    s_load_dwordx2 s[4:5], s[0:1], 104
    s_waitcnt lgkmcnt(0)
    v_mov_b32 v1, {TS}
    global_load_dword v2, v1, s[4:5]
    s_waitcnt vmcnt(0)
    v_readfirstlane_b32 s6, v2
    s_nop 3
L_ts_loop:
    s_memrealtime s[8:9]
    s_waitcnt lgkmcnt(0)
    s_sub_u32 s8, s8, s6
    s_cmp_lt_u32 s8, 6000
    s_cbranch_scc1 L_ts_loop
L_ts_end:
    s_endpgm
"""
def tiny_empty(name):
    return f"""
.globl {name}
.p2align 8
.type {name},@function
{name}:
    s_endpgm
"""
def build(kind):
    LL = f"; @launch kernel={K} grid=(256,1,1) block=(512,1,1) lds=163840"
    t = lambda n: f"; @launch kernel={n} grid=(1,1,1) block=(64,1,1) lds=0"
    if kind == "rec_real_spin":
        txt, _ = M.gen(); launches = [t("rec_kernel"), LL, t("spin_kernel")]; extra = [("rec_kernel", tiny_record("rec_kernel")), ("spin_kernel", tiny_spin("spin_kernel"))]
    elif kind == "empty_realpad":
        txt, _ = M.gen(stamps=True, opts=dict(pad=(11, 60))); launches = [t("e_kernel"), LL]; extra = [("e_kernel", tiny_empty("e_kernel"))]
    elif kind == "realpad_empty":
        txt, _ = M.gen(stamps=True, opts=dict(pad=(11, 60))); launches = [LL, t("e_kernel")]; extra = [("e_kernel", tiny_empty("e_kernel"))]
    elif kind == "realpad_list":
        txt, _ = M.gen(stamps=True, opts=dict(pad=(11, 60))); launches = [LL]; extra = []
    elif kind == "realpad_sc1":
        txt, _ = M.gen(stamps=True, opts=dict(pad=(11, 60), outflags="sc1")); launches = None; extra = []
    elif kind == "realpad90":
        txt, _ = M.gen(stamps=True, opts=dict(pad=(11, 90))); launches = None; extra = []
    lines = txt.split("\n")
    if launches is not None: lines[0:1] = launches
    txt = "\n".join(lines)
    a, b = txt.split('.section .rodata,"a"')
    txt = a + "".join(x[1] for x in extra) + '.section .rodata,"a"' + b + "".join(kernel_desc(x[0], 8, 0, 16) for x in extra)
    open(f"px_{kind}.s", "w").write(txt)
for k in ("rec_real_spin", "empty_realpad", "realpad_empty", "realpad_list", "realpad_sc1", "realpad90"): build(k)
```

```python
import sys, math
from asm import R, v, s, Alloc, kernel_desc
from prog import Prog, I, L, merge

KNAME = "gated_mix__ssm_conv_s4d__linear_attn_block__prompt_kernel"
MB = 1 << 20
UT, AT, OF, PART, ZP, GG = 0, 4*MB, 8*MB, 12*MB, 13*MB, 13*MB + 512*1024
F1, F2, F3, FU = 14*MB, 14*MB + 256*1024, 14*MB + 512*1024, 14*MB + 768*1024
FS = 128
STAMP_OFF = 200 << 20
ASZ, BSZ = 16384, 24576
SSZ = ASZ + BSZ
ST0 = 40960
U0, USZ = 0, 4608
XS0, S3B = 18432, 26624
KB0, KSZ = ST0, 10240
LF, S3F, S1F, T15, GATE = U0, U0 + 16, U0 + USZ, U0 + USZ + 16, U0 + 2*USZ
GWL = 30720
def wo_addr(j):
    return 81920 + 8192*j if j < 10 else 32768 + 8192*(j - 10)
def wo_base(j):
    return wo_addr(0) if j < 8 else (wo_addr(8) if j < 10 else wo_addr(10))
R1O, S2O, S3O = 1216, 2368, 2880
LOG2E = 0x3fb8aa3b
INV2PI = 0x3e22f983
SPIN_G, SPIN_L = 40000, 400000
MF = "v_mfma_f32_16x16x32_bf16"

def gen(stamps=False, opts=None):
    o = dict(hoist=True, kstart=1, nbk=10, nbuntil=13, exfirst=False, pfat=(0,1,4,8), nb0=8, nset0=60, nset=80, maxsl=52, parat=0, ea=3, pre3=24, utd=(1,1,2,2), uts=(4,4,5,5), wt0=0.8, wt14=1.0, wt15=1.0, ring=8, at2=1, at3=1, ka=30, zatom=1, prio=1, codepf=True, pf=True, late0=50, latestep=6, rot=False, spec=False, grot=False, sl2=2, sl3=8, n14=2, n15=9, gate=0, gatev=1, p1at=4, w1=5, sl1=2, worot=0, fs2=64, lf1=3, slb=1, zat=4)
    o.update(opts or {})
    S = Alloc('s', 3, 102)
    sW = S()
    kp = R('s', 4, 16); kq = R('s', 20, 8); kr = R('s', 28, 4); S.next = 32
    pX, pLA, pAI, pCR, pCI, pLDT, pDS = [kp.sub(2*i, 2) for i in range(7)]
    pWQ, pWO, pGW, pOUT = [kq.sub(2*i, 2) for i in range(4)]
    pDBG, pWS = kr.sub(0, 2), kr.sub(2, 2)
    srdWS = S(4)
    sMT, sHP, sMT2, sCT, sT, sT2, sT3, sCnt, sRot = [S() for _ in range(9)]
    sEx = S(2)
    st = [S(2)] if stamps else None
    smark = S.mark()
    def alloc_stamps(n):
        if stamps:
            del st[1:]
            st.extend(S(2) for _ in range(n - 1))
    role_now = [None]
    def pstamp(P, i):
        if stamps and o.get('pro') and i in o['pro']: P(f"s_memrealtime {st[2 + o['pro'].index(i)]}")
    def stamp(P, i):
        if o.get('pro') and 2 <= i <= 3: return
        if o.get('pad'):
            if i == 0: P(f"s_memrealtime {st[0]}")
            elif role_now[0] == 'c' and i == o['pad'][0]:
                l0 = f"L_pad_{i}"
                P.loop_begin(l0)
                P(f"""s_memrealtime {st[1]}
                s_waitcnt lgkmcnt(0)
                s_sub_u32 {st[1][0]}, {st[1][0]}, {st[0][0]}
                s_cmp_lt_u32 {st[1][0]}, {o['pad'][1]*100}
                s_cbranch_scc1 {l0}""")
                P.loop_end()
            return
        if stamps: P(f"{'s_memtime' if o.get('cyc') else 's_memrealtime'} {st[i]}")
        if o.get('hold') == i and role_now[0] == 'c':
            for _ in range(8): P("s_sleep 64")
    def dump_stamps(P, vT, d, role):
        if not stamps or o.get('pad'): return
        if o.get('dbgst'):
            if role == 1: return
            P(f"s_waitcnt vmcnt(0) lgkmcnt(0)\ns_mov_b64 exec, 1\nv_mov_b32 {vT}, 0\ns_not_b32 {st[0][1]}, {st[0][0]}")
            P(f"v_mov_b32 {d[0]}, {st[0][1]}\nglobal_atomic_umax {vT}, {d[0]}, {pDBG} offset:4 sc1\ns_nop 1")
            for i in range(len(st)):
                P(f"v_mov_b32 {d[0]}, {st[i][0]}\nglobal_atomic_umax {vT}, {d[0]}, {pDBG} offset:{8+4*i} sc1\ns_nop 1")
            return
        P(f"""s_waitcnt vmcnt(0) lgkmcnt(0)
        s_lshl_b32 {sT}, s2, 3
        s_add_u32 {sT}, {sT}, {sW}
        s_lshl_b32 {sT}, {sT}, 7
        s_add_u32 {sT}, {sT}, {STAMP_OFF}
        v_mov_b32 {vT}, {sT}
        s_mov_b64 exec, 1""")
        for i in range(len(st)):
            P(f"""v_mov_b32 {d[0]}, {st[i][0]}
            v_mov_b32 {d[1]}, {st[i][1]}
            buffer_store_dwordx2 {d.sub(0,2)}, {vT}, {srdWS}, 0 offen offset:{8*i}
            s_nop 1""")
    def srd(P, r, p, size):
        P(f"s_mov_b32 {r[0]}, {p[0]}\ns_mov_b32 {r[1]}, {p[1]}\ns_mov_b32 {r[2]}, {size}\ns_mov_b32 {r[3]}, 0x20000")
    uid = [0]
    def lab(n): uid[0] += 1; return f"L_{n}_{uid[0]}"
    def poll_global(P, vaddr, vtmp, want, srdr, cmp='ne', sleep=0, atomic=False):
        l0, l1 = lab("poll"), lab("polld")
        P(f"s_mov_b32 {sCnt}, 0")
        P.loop_begin(l0)
        if sleep: P(f"s_sleep {sleep}")
        P(f"v_mov_b32 {vtmp}, 0\nbuffer_atomic_add {vtmp}, {vaddr}, {srdr}, 0 offen sc0 sc1" if atomic else f"buffer_load_dword {vtmp}, {vaddr}, {srdr}, 0 offen sc1")
        P(f"""s_add_u32 {sCnt}, {sCnt}, 1
        s_cmp_gt_u32 {sCnt}, {SPIN_G}
        s_waitcnt vmcnt(0)
        s_cbranch_scc1 {l1}
        v_cmp_{cmp}_u32 vcc, {want}, {vtmp}
        s_cbranch_vccnz {l0}""")
        P.loop_end()
        P(f"{l1}:")
    def atomic_read(r, vaddr): return f"v_mov_b32 {r}, 0\nbuffer_atomic_add {r}, {vaddr}, {srdWS}, 0 offen sc0 sc1"
    def poll_cnt(P, vaddr, r, want, sleep, done, first_issued=False):
        l0 = lab("pc")
        P(f"s_mov_b32 {sCnt}, 0")
        if not first_issued: P(atomic_read(r[0], vaddr))
        sl = f"s_sleep {sleep}" if sleep else ""
        P.loop_begin(l0)
        P(f"""{sl}
        {atomic_read(r[1], vaddr)}
        s_waitcnt vmcnt(1)
        v_cmp_gt_u32 vcc, {want}, {r[0]}
        s_cbranch_vccz {done}
        {sl}
        {atomic_read(r[0], vaddr)}
        s_add_u32 {sCnt}, {sCnt}, 1
        s_waitcnt vmcnt(1)
        v_cmp_gt_u32 vcc, {want}, {r[1]}
        s_cbranch_vccz {done}
        s_cmp_lt_u32 {sCnt}, {SPIN_G}
        s_cbranch_scc1 {l0}""")
        P.loop_end()
    def ldsspin(P, vaddr, off, vt, want, sleep):
        l0 = lab("go")
        P(f"s_mov_b32 {sCnt}, 0")
        P.loop_begin(l0)
        P(f"""ds_read_b32 {vt}, {vaddr} offset:{off}
        s_add_u32 {sCnt}, {sCnt}, 1
        s_cmp_gt_u32 {sCnt}, {SPIN_L}
        s_waitcnt lgkmcnt(0)
        s_cbranch_scc1 {l0}_d
        v_cmp_gt_u32 vcc, {want}, {vt}
        s_cbranch_vccz {l0}_d
        s_sleep {sleep}
        s_branch {l0}""")
        P.loop_end()
        P(f"{l0}_d:")
    def bf16r(P, dst, src):
        P(f"v_cvt_pk_bf16_f32 {dst}, {src}, {src}\nv_lshlrev_b32 {dst}, 16, {dst}")

    E = Prog()
    E(f"""s_cmp_ge_u32 s2, 256
    s_cbranch_scc1 L_end
    s_load_dwordx16 {kp}, s[0:1], 0
    s_load_dwordx8 {kq}, s[0:1], 64
    s_load_dwordx4 {kr}, s[0:1], 96""")
    stamp(E, 0)
    E(f"""v_lshrrev_b32 v1, 6, v0
    v_and_b32 v0, 63, v0
    s_and_b32 {sT}, s2, 7
    v_readfirstlane_b32 {sW}, v1
    s_lshr_b32 {sT2}, s2, 3
    s_and_b32 {sMT}, {sT}, 1
    s_lshl_b32 {sMT}, {sMT}, 3
    s_and_b32 {sT3}, {sT2}, 7
    s_add_u32 {sMT}, {sMT}, {sT3}
    s_lshr_b32 {sHP}, {sT}, 1
    s_lshl_b32 {sHP}, {sHP}, 2
    s_lshr_b32 {sT3}, {sT2}, 3
    s_add_u32 {sHP}, {sHP}, {sT3}
    s_and_b32 {sMT2}, {sT}, 3
    s_lshl_b32 {sMT2}, {sMT2}, 2
    s_and_b32 {sT3}, {sT2}, 3
    s_add_u32 {sMT2}, {sMT2}, {sT3}
    s_lshr_b32 {sCT}, {sT}, 2
    s_lshl_b32 {sCT}, {sCT}, 3
    s_lshr_b32 {sT3}, {sT2}, 2
    s_add_u32 {sCT}, {sCT}, {sT3}
    s_mul_i32 {sRot}, {sMT2}, {2*o['worot']}
    s_add_u32 {sRot}, {sRot}, {sCT}
    s_lshl_b32 {sRot}, {sRot}, 1
    s_and_b32 {sRot}, {sRot}, {15 if o['rot'] else 0}
    s_cmp_lt_u32 {sW}, 4
    s_cbranch_scc1 L_compute""")
    vL = v(0)

    P = Prog()
    S.reset(smark); V = Alloc('v', 1, 256)
    srdX, srdW, srdWO, srdXT, srdD = S(4), S(4), S(4), S(4), S(4)
    sLW, sM0A, sM0B, sCH, sKB, sUB, sBase, sPFx, sMask16, sWant, sKR = [S() for _ in range(11)]
    soA = [S() for _ in range(4)]; soB = [S() for _ in range(6)]
    alloc_stamps(4)
    if stamps: st.extend([r.sub(2*i, 2) for r in (srdX, srdW, srdXT, srdD) for i in range(2)])
    flat = lambda gs: [x for g in gs for x in g]
    one_by_one = lambda txt, tag=None: [[x] for x in L(txt, tag)]
    vT, vT2 = V(), V()
    vAo = [V(), V()]; vBo = [V(), V()]
    vPF, vDum, vLdt, vDsk = V(), V(), V(), V()
    vPar = V(4)
    vUA, vUL, vC3, vZero, vE, vEA = [V() for _ in range(6)]
    vUD, vWO, vWO2, vU, vLF, vOne, vKR, vKX = [V() for _ in range(8)]
    vTA = [V() for _ in range(4)]; vAT = [vUA, vUL]
    vTr = V() if o.get('trace') else None
    bx = [V(4) for _ in range(5)]
    kmark = V.mark()
    def trace(i):
        if o.get('trace'): P(f"s_memtime {sEx}\ns_waitcnt lgkmcnt(0)\nv_writelane_b32 {vTr}, {sEx[0]}, {i}")
    P(f"""s_sub_u32 {sLW}, {sW}, 4
    v_lshrrev_b32 {vT}, 3, {vL}
    v_lshlrev_b32 {vAo[0]}, 11, {vT}
    v_mul_u32_u24 {vBo[0]}, 6144, {vT}
    v_lshrrev_b32 {vT}, 4, {vL}
    v_and_b32 {vT2}, 7, {vL}
    v_xor_b32 {vT2}, {vT2}, {vT}
    v_lshl_add_u32 {vAo[0]}, {vT2}, 4, {vAo[0]}
    v_and_b32 {vT}, 1, {vT}
    v_lshlrev_b32 {vT}, 1, {vT}
    v_and_b32 {vT2}, 7, {vL}
    v_xor_b32 {vT2}, {vT2}, {vT}
    v_lshl_add_u32 {vBo[0]}, {vT2}, 4, {vBo[0]}
    s_lshl_b32 {sT}, {sMT}, 18
    s_lshl_b32 {sT2}, {sLW}, 16
    s_add_u32 {sT}, {sT}, {sT2}
    v_add_u32 {vAo[0]}, {sT}, {vAo[0]}
    v_xor_b32 {vAo[1]}, 64, {vAo[0]}
    s_lshl_b32 {sT}, {sHP}, 7
    s_mul_i32 {sT2}, {sLW}, {2*8*6144}
    s_add_u32 {sT}, {sT}, {sT2}
    v_add_u32 {vBo[0]}, {sT}, {vBo[0]}
    v_xor_b32 {vBo[1]}, 64, {vBo[0]}
    s_lshl_b32 {sM0A}, {sLW}, 12
    s_lshl_b32 {sM0B}, {sLW}, 11
    s_add_u32 {sM0B}, {sM0B}, {ASZ}
    s_lshl_b32 {sCH}, s2, 2
    s_add_u32 {sCH}, {sCH}, {sLW}
    s_mov_b32 {srdX[2]}, {4*MB}
    s_mov_b32 {srdX[3]}, 0x20000
    s_mov_b32 {srdW[2]}, {6*MB}
    s_mov_b32 {srdW[3]}, 0x20000""")
    for i in range(4): P(f"s_mov_b32 {soA[i]}, {16384*i - 1024*i}")
    for i in range(6): P(f"s_mov_b32 {soB[i]}, {(i>>1)*2048 + (i&1)*(8*6144 - 1024)}")
    par_loads = L(f"""global_load_ushort {vLdt}, {vDum}, {pLDT}
    global_load_dword {vPar[0]}, {vE}, {pLA}
    global_load_dword {vPar[1]}, {vE}, {pAI}
    global_load_dword {vPar[2]}, {vE}, {pCR}
    global_load_dword {vPar[3]}, {vE}, {pCI}
    global_load_ushort {vDsk}, {vDum}, {pDS}""")
    P(f"""s_and_b32 {sKR}, {sHP}, 12
    s_lshl_b32 {sT}, {sKR}, 7
    s_mul_i32 {sT2}, {sKR}, {64*6144}
    s_waitcnt lgkmcnt(0)
    s_add_u32 {srdX[0]}, {pX[0]}, {sT}
    s_addc_u32 {srdX[1]}, {pX[1]}, 0
    s_add_u32 {srdW[0]}, {pWQ[0]}, {sT2}
    s_addc_u32 {srdW[1]}, {pWQ[1]}, 0""")
    pstamp(P, 2)
    def dma_tile(t):
        base = ST0 + (t % 3) * SSZ; tag = f"t{t}"
        g = []
        for i in range(4):
            pre = L(f"s_add_u32 m0, {sM0A}, {base}") if i == 0 else []
            g.append(pre + L(f"buffer_load_dwordx4 {vAo[i&1]}, {srdX}, {soA[i]} offen offset:{1024*i} lds", tag))
        for i in range(6):
            pre = L(f"s_add_u32 m0, {sM0B}, {base + (i>>1)*8192}") if (i & 1) == 0 else []
            g.append(pre + L(f"buffer_load_dwordx4 {vBo[i&1]}, {srdW}, {soB[i]} offen offset:{1024*(i&1)} lds", tag))
        g[-1] = g[-1] + L(f"""s_add_u32 {srdX[0]}, {srdX[0]}, 128
        s_addc_u32 {srdX[1]}, {srdX[1]}, 0
        s_add_u32 {srdW[0]}, {srdW[0]}, {64*6144}
        s_addc_u32 {srdW[1]}, {srdW[1]}, 0""")
        if t in (3, 7, 11):
            g[-1] = g[-1] + L(f"""s_cmp_eq_u32 {sKR}, {15 - t}
            s_cselect_b64 {srdX.sub(0,2)}, {pX}, {srdX.sub(0,2)}
            s_cselect_b64 {srdW.sub(0,2)}, {pWQ}, {srdW.sub(0,2)}""")
        return g
    srdPF = srdWO
    def pf(i):
        if not o['pf']: return []
        return L(f"""s_add_u32 {sBase}, {sKR}, {4*i}
        s_and_b32 {sBase}, {sBase}, 15
        s_lshl_b32 {sPFx}, {sBase}, 7
        s_add_u32 {sPFx}, {sPFx}, 384
        s_bitcmp1_b32 {sBase}, 2
        s_cselect_b32 {sPFx}, 0x7ff00000, {sPFx}
        s_mul_i32 {sBase}, {sBase}, {64*6144}
        s_cmp_eq_u32 {sLW}, 0
        s_cselect_b32 {sPFx}, {sBase}, {sPFx}
        buffer_load_dword {vDum}, {vPF}, {srdPF}, {sPFx} offen""", "pf")
    t0_ = dma_tile(0)
    P.extend(flat(t0_[:8]))
    t0_rest = t0_[8:]
    pstamp(P, 3)
    if o['pf']:
        P(f"""s_and_b32 {sT}, {sMT}, 7
        s_mul_i32 {sT}, {sT}, {32*6144}
        s_and_b32 {sT2}, {sHP}, 3
        s_lshl_b32 {sT3}, {sT2}, 11
        s_add_u32 {sT}, {sT}, {sT3}
        s_or_b32 {sT3}, {sHP}, 3
        s_lshl_b32 {sT3}, {sT3}, 7
        s_add_u32 {sT}, {sT}, {sT3}
        s_lshl_b32 {sT2}, {sT2}, 16
        s_lshl_b32 {sT3}, {sMT}, 18
        s_add_u32 {sT2}, {sT2}, {sT3}
        s_cmp_eq_u32 {sLW}, 0
        s_cselect_b32 {sT}, {sT}, {sT2}
        s_cselect_b32 {sT2}, 3, 1
        s_cselect_b32 {srdPF[0]}, {pWQ[0]}, {pX[0]}
        s_cselect_b32 {srdPF[1]}, {pWQ[1]}, {pX[1]}
        s_lshl_b32 {sT2}, {sT2}, 11
        v_lshrrev_b32 {vT}, 1, {vL}
        v_mul_u32_u24 {vPF}, {sT2}, {vT}
        v_and_b32 {vT}, 1, {vL}
        v_lshl_add_u32 {vPF}, {vT}, 6, {vPF}
        v_add_u32 {vPF}, {sT}, {vPF}
        s_and_b32 {sT}, {sHP}, 7
        s_cmp_lt_u32 {sT}, 3
        s_cselect_b32 {sT}, {6*MB}, 0
        s_cmp_eq_u32 {sLW}, 0
        s_cselect_b32 {sT}, {sT}, 0
        s_cmp_eq_u32 {sLW}, 1
        s_cselect_b32 {srdPF[2]}, {4*MB}, {sT}
        s_mov_b32 {srdPF[3]}, 0x20000""")
    side = []
    def G(txt, tag=None): side.extend(one_by_one(txt, tag))
    vSpare = V(1, 2)
    FV = [[None] + [V() for _ in range(31)] for _ in range(2)]
    his = list(range(9)) + [256, 258, 260, 262, 264, 516, 520, 772, 776, 1032, 1288, 1544, 1800]
    EV = [{h: V() for h in his} for _ in range(2)]
    fA = V(32); xo = fA.sub(0, 16); vUR = [fA[16 + i] for i in range(4)]
    tmark = V.mark()
    vDt = V()
    al, be, cr, ci, ta, tb_ = [V() for _ in range(6)]
    W = {p: (V(), V(), V()) for p in (1, 2, 8, 256)}
    xa, xb, xc, xd = (V(), V()), (V(), V()), (V(), V()), (V(), V())
    UTL = XS0
    G(f"""s_mov_b32 {srdWS[0]}, {pWS[0]}
    s_mov_b32 {srdWS[1]}, {pWS[1]}
    s_mov_b32 {srdWS[2]}, 0x10000000
    s_mov_b32 {srdWS[3]}, 0x20000
    s_mul_i32 {sKB}, {sLW}, {KSZ}
    s_add_u32 {sKB}, {sKB}, {KB0}
    s_mul_i32 {sUB}, {sLW}, {USZ}
    s_add_u32 {sUB}, {sUB}, {U0}
    v_lshrrev_b32 {vT}, 4, {vL}
    v_lshlrev_b32 {vUR[0]}, 10, {vT}
    v_bfe_u32 {vT2}, {vL}, 2, 2
    v_lshl_add_u32 {vUR[0]}, {vT2}, 7, {vUR[0]}
    v_lshlrev_b32 {vUA}, 14, {vT2}
    v_lshl_add_u32 {vUA}, {vT}, 6, {vUA}
    v_and_b32 {vT}, 1, {vT}
    v_lshl_add_u32 {vUR[0]}, {vT}, 6, {vUR[0]}
    v_bfe_u32 {vT}, {vL}, 1, 1
    v_bfe_u32 {vT2}, {vL}, 3, 1
    v_xor_b32 {vT}, {vT}, {vT2}
    v_lshl_add_u32 {vUR[0]}, {vT}, 4, {vUR[0]}
    v_and_b32 {vT}, 1, {vL}
    v_lshl_add_u32 {vUR[0]}, {vT}, 3, {vUR[0]}
    v_and_b32 {vT}, 3, {vL}
    v_lshl_add_u32 {vUA}, {vT}, 4, {vUA}
    v_lshlrev_b32 {vEA}, 6, {vT}
    s_and_b32 {sT}, {sHP}, 3
    s_mul_i32 {sT2}, {sT}, 43
    s_lshr_b32 {sT2}, {sT2}, 7
    s_mul_i32 {sT2}, {sT2}, 3
    s_sub_u32 {sT}, {sT}, {sT2}
    s_mul_i32 {sT}, {sT}, {SSZ}
    s_add_u32 {sT}, {sT}, {sM0A}
    s_add_u32 {sT}, {sT}, {ST0}
    v_add_u32 {vUR[0]}, {sT}, {vUR[0]}
    v_xor_b32 {vUR[1]}, 32, {vUR[0]}
    v_xor_b32 {vUR[2]}, 64, {vUR[0]}
    v_xor_b32 {vUR[3]}, 96, {vUR[0]}
    s_lshl_b32 {sT}, {sHP}, 18
    s_lshl_b32 {sT2}, {sMT}, 10
    s_add_u32 {sT}, {sT}, {sT2}
    s_lshl_b32 {sT2}, {sLW}, 8
    s_add_u32 {sT}, {sT}, {sT2}
    v_add_u32 {vUA}, {sT}, {vUA}
    s_lshl_b32 {sT}, {sCT}, 4
    s_add_u32 {sT}, {sT}, {sMT2}
    s_mul_i32 {sT}, {sT}, {FS}
    s_add_u32 {sT}, {sT}, {F3}
    v_mov_b32 {vC3}, {sT}
    v_mov_b32 {vZero}, 0
    s_lshl_b32 {sT}, s2, 14
    s_lshl_b32 {sT2}, {sLW}, 4
    s_add_u32 {sT}, {sT}, {sT2}
    v_lshl_add_u32 {vUD}, {vL}, 6, {sT}
    v_lshrrev_b32 {vT}, 3, {vL}
    v_lshlrev_b32 {vWO2}, 11, {vT}
    v_lshrrev_b32 {vT}, 4, {vL}
    v_lshlrev_b32 {vT}, 1, {vT}
    v_and_b32 {vT2}, 7, {vL}
    v_xor_b32 {vT}, {vT}, {vT2}
    v_lshl_add_u32 {vWO2}, {vT}, 4, {vWO2}
    s_lshl_b32 {sT}, {sCT}, 7
    v_add_u32 {vWO2}, {sT}, {vWO2}
    s_lshl_b32 {sT}, {sLW}, 15
    v_add_u32 {vWO}, {sT}, {vWO2}
    v_and_b32 {vT}, 15, {vL}
    v_lshrrev_b32 {vT2}, 4, {vL}
    v_lshlrev_b32 {vU}, 5, {vT}
    v_lshl_add_u32 {vU}, {vT2}, 4, {vU}
    s_add_u32 {sT}, {sUB}, 32
    v_add_u32 {vU}, {sT}, {vU}
    v_lshlrev_b32 {al}, 3, {vT2}
    v_sub_u32 {al}, {vT}, {al}
    v_lshlrev_b32 {vTA[2]}, 2, {vT2}
    v_sub_u32 {vTA[2]}, {vT}, {vTA[2]}
    v_lshlrev_b32 {vTA[3]}, 2, {vTA[2]}
    s_add_u32 {sT}, {sKB}, {S3O + 64 - 268 + 256}
    v_add_u32 {vTA[3]}, {sT}, {vTA[3]}
    v_lshlrev_b32 {vTA[2]}, 3, {vTA[2]}
    s_add_u32 {sT}, {sKB}, {S2O + 128 - 280 + 256}
    v_add_u32 {vTA[2]}, {sT}, {vTA[2]}
    v_lshlrev_b32 {vTA[0]}, 4, {vT2}
    v_lshrrev_b32 {vT2}, 1, {vT}
    v_lshlrev_b32 {vT2}, 2, {vT2}
    v_sub_u32 {vTA[0]}, {vTA[0]}, {vT2}
    v_and_b32 {vT}, 1, {vT}
    v_xor_b32 {vT}, 1, {vT}
    v_mul_u32_u24 {vT}, {R1O+4}, {vT}
    v_add_u32 {vTA[0]}, {vTA[0]}, {vT}
    s_add_u32 {sT}, {sKB}, {4*(263-256)}
    v_add_u32 {vTA[0]}, {sT}, {vTA[0]}
    v_add_u32 {vTA[1]}, 512, {vTA[0]}
    s_lshl_b32 {sT}, {sLW}, 2
    s_add_u32 {sT}, {sT}, {LF}
    v_mov_b32 {vLF}, {sT}
    v_mov_b32 {vOne}, 1
    v_and_b32 {vT}, 31, {vL}
    v_mul_u32_u24 {vKR}, 272, {vT}
    v_lshrrev_b32 {vT}, 5, {vL}
    v_lshl_add_u32 {vKR}, {vT}, 4, {vKR}
    v_add_u32 {vKR}, {sKB}, {vKR}
    v_lshlrev_b32 {vT}, 4, {vL}
    v_sub_u32 {vKX}, 1072, {vT}
    v_add_u32 {vKX}, {sKB}, {vKX}
    s_mov_b32 {sMask16}, 0xffff""")
    for bi, (start, width, val) in enumerate([(11, 3, 0x3f803f80), (6, 5, 0x3f803f80), (5, 7, 0x3f803f80), (4, 9, 0x3f803f80), (12, 2, None)]):
        G(f"""v_add_u32 {be}, {start + 16}, {al}
        v_mov_b32 {cr}, {(1 << width) - 1}
        v_med3_i32 {be}, {be}, 0, 31
        v_lshlrev_b32 {be}, {be}, {cr}""")
        for d in range(4):
            G(f"""v_bfe_i32 {ta}, {be}, {16 + 2*d}, 1
            v_bfe_i32 {tb_}, {be}, {17 + 2*d}, 1
            v_bfi_b32 {bx[bi][d]}, {sMask16}, {ta}, {tb_}""")
            if val: G(f"v_and_b32 {bx[bi][d]}, {val}, {bx[bi][d]}")
    n_setup = len(side)
    G(f"""v_lshlrev_b32 {vDt}, 16, {vLdt}
    v_mul_f32 {vDt}, {LOG2E}, {vDt}
    v_exp_f32 {vDt}, {vDt}
    v_lshlrev_b32 {vDsk}, 16, {vDsk}
    v_cvt_pk_bf16_f32 {vDt}, {vDt}, {vDt}
    v_lshlrev_b32 {vDt}, 16, {vDt}""")
    def put(r, x, neg): G(f"v_cvt_pk_bf16_f32 {r}, {x[0]}, {'-' if neg else ''}{x[1]}")
    def cmul(y, x, w):
        G(f"""v_mul_f32 {y[0]}, {x[1]}, {w[2]}
        v_mul_f32 {y[1]}, {x[1]}, {w[0]}
        v_fmac_f32 {y[0]}, {x[0]}, {w[0]}
        v_fmac_f32 {y[1]}, {x[0]}, {w[1]}""")
    rho = lambda r, h: 8*(r >> 2) + 4*h + (r & 3)
    rows = {}
    def addrow(hi, r, h): rows.setdefault(hi, []).append(rho(r, h))
    for r in range(9): addrow(r, r, 0)
    for r, off in enumerate([0, 0, 2, 4, 4, 4, 6, 8, 8]): addrow(256 + off, r, 1)
    for h in range(2):
        addrow(516 + 256*h, 9, h); addrow(520 + 256*h, 10, h)
        addrow(1032 + 256*h, 11, h); addrow(1544 + 256*h, 12, h)
    assert sorted(rows) == sorted(his)
    import struct
    f2u = lambda x: struct.unpack('<I', struct.pack('<f', x))[0]
    for st_ in range(2):
        unp = (lambda d, x: f"v_lshlrev_b32 {d}, 16, {x}") if st_ == 0 else (lambda d, x: f"v_and_b32 {d}, 0xffff0000, {x}")
        G(f"""{unp(al, vPar[0])}
        v_mul_f32 {al}, {LOG2E}, {al}
        v_exp_f32 {al}, {al}
        {unp(be, vPar[1])}
        {unp(cr, vPar[2])}
        v_cvt_pk_bf16_f32 {al}, {al}, {al}
        {unp(ci, vPar[3])}
        v_lshlrev_b32 {al}, 16, {al}
        v_mul_f32 {al}, {al}, {vDt}
        v_mul_f32 {be}, {be}, {vDt}
        v_mul_f32 {cr}, {cr}, {vDt}
        v_mul_f32 {ci}, {ci}, {vDt}
        v_mul_f32 {al}, {LOG2E ^ 0x80000000}, {al}
        v_mul_f32 {be}, {INV2PI}, {be}
        v_add_f32 {cr}, {cr}, {cr}
        v_add_f32 {ci}, {ci}, {ci}""")
        for p in (8, 1, 256):
            w = W[p]
            G(f"""v_mul_f32 {ta}, {f2u(float(p))}, {al}
            v_mul_f32 {tb_}, {f2u(float(p))}, {be}
            v_exp_f32 {ta}, {ta}
            v_fract_f32 {tb_}, {tb_}
            v_cos_f32 {w[0]}, {tb_}
            v_sin_f32 {w[1]}, {tb_}
            v_mul_f32 {w[0]}, {ta}, {w[0]}
            v_mul_f32 {w[1]}, {ta}, {w[1]}
            v_sub_f32 {w[2]}, 0, {w[1]}""")
        cmul(W[2], W[1], W[1]); G(f"v_sub_f32 {W[2][2]}, 0, {W[2][1]}")
        put(FV[st_][1], W[8], False)
        cur = W[8]
        for j in range(2, 32):
            nx = xa if cur is not xa else xb
            cmul(nx, cur, W[8]); put(FV[st_][j], nx, False); cur = nx
        base = (cr, ci); put(EV[st_][0], base, True)
        def chain(b, hi0, step, n):
            cur = b
            for k in range(1, n):
                nx = xa if cur is not xa else xb
                cmul(nx, cur, W[step]); put(EV[st_][hi0 + step*k], nx, True); cur = nx
        chain(base, 0, 1, 9)
        cmul(xc, base, W[256]); put(EV[st_][256], xc, True)
        cmul(xa, xc, W[2]); put(EV[st_][258], xa, True)
        cmul(xd, xa, W[2]); put(EV[st_][260], xd, True)
        cmul(xa, xd, W[2]); put(EV[st_][262], xa, True)
        cmul(xc, xa, W[2]); put(EV[st_][264], xc, True)
        chain(xd, 260, 256, 3)
        chain(xc, 264, 256, 7)
    if o.get('nokgen'): side = side[:n_setup]
    pos = [0]
    def take_n(n):
        r = side[pos[0]:pos[0] + n]; pos[0] += len(r); return r
    t1 = dma_tile(1); nb0 = o['nb0']
    assert 60 <= o['nset0'] + o['nset'] <= n_setup
    P.extend(flat(take_n(o['nset0'])))
    P.extend(merge(t0_rest + t1[:nb0], take_n(o['nset'])))
    pstamp(P, 4)
    P("@waitvm t0")
    pstamp(P, 5)
    P("s_barrier")
    trace(0)
    stamp(P, 1)
    def ut_rd(it):
        l0 = lab("utr")
        P(f"s_and_b32 {sBase}, {sHP}, 3\ns_cmp_lg_u32 {sBase}, {it}\ns_cbranch_scc1 {l0}")
        for c in range(4):
            for t in range(2): P(f"ds_read_b64_tr_b16 {xo.sub(4*c + 2*t, 2)}, {vUR[c ^ t]} offset:{512*t}")
        P(f"{l0}:")
    ut_st = [L(f"s_mov_b32 {sBase}, {UT + c*65536}\nbuffer_store_dwordx4 {xo.sub(4*c,4)}, {vUA}, {srdWS}, {sBase} offen sc1", "uts") for c in range(4)]
    zero_pad = L(f"""s_mov_b32 m0, {sUB}
    s_mov_b32 {sBase}, 0x7ff00000
    s_mov_b64 exec, 0xffffffff
    buffer_load_dwordx4 {vUD}, {srdWS}, {sBase} offen lds
    s_mov_b64 exec, -1""")
    extra = {it: [] for it in range(14)}
    if not o.get('nout'):
        for i, it in enumerate(o['uts']): extra[it].append(ut_st[i])
    par_grp = (L(f"s_lshl_b32 {sBase}, {sCH}, 8\nv_lshl_add_u32 {vE}, {vL}, 2, {sBase}\ns_lshl_b32 {sBase}, {sCH}, 1\nv_mov_b32 {vDum}, {sBase}") + par_loads)
    extra[11].append(zero_pad)
    EA, EC = o['uts'][-1] + o['ea'], 13
    rest = len(side) - n_setup
    wts = [0.0 if it < o['kstart'] else (o['wt0'] if extra.get(it) else 1.0) for it in range(14)] + [o['wt14'], o['wt15']]
    cum = [sum(wts[:i+1]) / sum(wts) for i in range(16)]
    take = lambda it: take_n(min(o['maxsl'], n_setup + int(round(cum[it] * rest)) - pos[0]) if it < 15 else len(side))
    OOL = Prog()
    carry = t1[nb0:] + [par_grp]
    for it in range(14):
        sl = take(it)
        if it < 4: ut_rd(it)
        if it == EC: P(f"buffer_load_dword {vE}, {vEA}, {srdD}, 0 offen sc1")
        tl = dma_tile(it + 2)
        nb = o['nbk'] if it < o['nbuntil'] else 10
        ex = list(extra[it])
        for k_, (at_, idx_) in enumerate(zip(o['pfat'], range(4))):
            if at_ == it and o['pf']: ex.append(pf(idx_))
        mains = [list(g) for g in (carry + ex + tl[:nb] if o['exfirst'] else carry + tl[:nb] + ex)]
        if o['hoist']:
            for gi in range(1, len(mains)):
                if mains[gi][0].txt.startswith('s_add_u32 m0'): mains[gi-1].append(mains[gi].pop(0))
        P.extend(merge(mains, sl))
        carry = tl[nb:]
        if it == EA:
            P(f"""s_cmp_eq_u32 {sLW}, 0
            s_cselect_b32 {srdD[2]}, 256, 0
            s_cselect_b32 {sWant}, 64, 0
            s_mov_b64 {srdD.sub(0,2)}, {pDBG}
            s_mov_b32 {srdD[3]}, 0x20000
            s_and_b32 {sBase}, s2, 3
            s_lshl_b32 {sBase}, {sBase}, 6
            s_mov_b64 exec, 1
            buffer_atomic_add {vOne}, {vZero}, {srdD}, {sBase} offen sc1
            s_mov_b64 exec, -1""")
        if it == EC:
            P(f"v_cmp_gt_u32 vcc, {sWant}, {vE}\ns_cbranch_vccnz L_eslow\nL_eback:")
            OOL("L_eslow:"); poll_global(OOL, vEA, vE, 64, srdD, 'gt', sleep=32); OOL("s_branch L_eback")
        if it == EA - 1: P('@waitvm uts')
        if it < 4: P('s_waitcnt lgkmcnt(0)')
        trace(3*it + 1)
        P(f"@waitvm t{it+1}")
        trace(3*it + 2)
        P("s_barrier")
        trace(3*it + 3)
    stamp(P, 2)
    P.extend(flat(carry))
    srd(P, srdWO, pWO, 2*MB)
    P(f"s_lshl_b32 {sM0A}, {sLW}, 11")
    def dma_wo(j):
        return [L(f"""s_add_u32 m0, {sM0A}, {wo_addr(j)}
        s_add_u32 {sBase}, {sRot}, {j}
        s_and_b32 {sBase}, {sBase}, 15
        s_lshl_b32 {sBase}, {sBase}, 17
        buffer_load_dwordx4 {vWO}, {srdWO}, {sBase} offen lds""", "wo"),
        L(f"""s_add_u32 {sBase}, {sBase}, {16384 - 1024}
        buffer_load_dwordx4 {vWO}, {srdWO}, {sBase} offen offset:1024 lds""", "wo")]
    d = []
    for i in range(4):
        d.append(L((f"s_add_u32 m0, {sUB}, 512\n" if i == 0 else "") + f"s_mov_b32 {sBase}, {UT + 3072*i}\nbuffer_load_dwordx4 {vUD}, {srdWS}, {sBase} offen offset:{1024*i} sc1 lds", "uT"))
    P.extend(merge(d + [g for j in range(0, o['n14']) for g in dma_wo(j)], take(14)))
    P("@waitvm t15\ns_barrier")
    z4 = bx[0]
    P.extend(merge([g for j in range(o['n14'], o['n14'] + o['n15']) for g in dma_wo(j)], take(15)))
    assert pos[0] >= len(side)
    ldsspin(P, vZero, T15, vE, 4, 1)
    stamp(P, 3)
    V.reset(tmark)
    kacc = V(16); e0, e1 = V(4), V(4); ta, tb_, one = V(), V(), V()
    sK = S()
    P(f"s_sub_u32 m0, {sKB}, 16384\nv_mov_b32 {one}, 0x3f80")
    for r in range(4): P(f"v_mov_b32 {e1[r]}, 0")
    def fw(st_): return [L(f"ds_write_addtid_b32 {one} offset:16384")] + [L(f"ds_write_addtid_b32 {FV[st_][j]} offset:{16384 + j*272}") for j in range(1, 32)]
    def ew(st_): return [L(f"ds_write_addtid_b32 {EV[st_][h]} offset:{16384 + row*272}") for h in his for row in rows[h]]
    def rd(dst): return [L(f"ds_read_b128 {dst.sub(4*ks,4)}, {vKR} offset:{32*ks}") for ks in range(8)]
    base0 = FV[0][1].idx + (FV[0][1].idx & 1)
    assert FV[1][1].idx == FV[0][31].idx + 1
    eA = R('v', vSpare.idx, 32)
    assert eA.idx % 2 == 0 and eA.idx + 32 <= FV[1][1].idx
    fB = R('v', FV[1][1].idx + (FV[1][1].idx & 1), 32)
    assert fB.idx + 32 <= EV[1][0].idx
    mm = lambda e, f, first: [L(f"v_mfma_f32_32x32x16_bf16 {kacc}, {e.sub(4*ks,4)}, {f.sub(4*ks,4)}, {0 if (first and ks == 0) else kacc}") for ks in range(8)]
    P.extend(flat(fw(0) + rd(fA) + ew(0) + rd(eA)))
    w1 = fw(1)
    P.extend(flat(w1[:8]))
    P.extend(merge(mm(eA, fA, True), w1[8:]))
    P.extend(flat(rd(fB) + ew(1) + rd(eA)))
    P(f"v_lshl_add_u32 {ta}, {vL}, 4, {sKB}")
    zw = [L(f"ds_write_b128 {ta}, {e1} offset:{1024*i}") for i in range(4)]
    P.extend(merge(mm(eA, fB, False), zw))
    k = kacc
    stamp(P, 4)
    P(f"""v_cmp_eq_u32 vcc, 0, {vL}
    v_cndmask_b32 {ta}, 0, {vDsk}, vcc
    v_lshl_add_u32 {tb_}, {vL}, 1, {sKB}
    v_add_f32 {k[0]}, {k[0]}, {ta}""")
    for d in range(4): P(f"v_cvt_pk_bf16_f32 {e0[d]}, {k[7-2*d]}, {k[6-2*d]}")
    P(f"ds_write_b128 {vKX}, {e0}")
    for d in range(4): P(f"v_cvt_pk_bf16_f32 {e1[d]}, {k[8-2*d]}, {k[7-2*d]}")
    P(f"""ds_write_b128 {vKX}, {e1} offset:{R1O}
    v_cvt_pk_bf16_f32 {e0[0]}, {vZero}, {k[8]}
    v_cvt_pk_bf16_f32 {e0[1]}, {k[8]}, {k[8]}
    v_cvt_pk_bf16_f32 {e0[2]}, {k[0]}, {vZero}
    v_cvt_pk_bf16_f32 {e0[3]}, {k[9]}, {k[10]}
    v_cvt_pk_bf16_f32 {e1[0]}, {k[11]}, {k[12]}
    v_cvt_pk_bf16_f32 {e1[1]}, {k[10]}, {k[10]}
    v_mov_b32 {ta}, {sKB}
    ds_write_addtid_b32 {e0[3]} offset:{16384 + S2O + 128}
    ds_write_b16 {tb_}, {e1[0]} offset:{S3O + 64}
    ds_write_b16_d16_hi {tb_}, {e1[0]} offset:{S3O + 64 + 128}
    s_mov_b64 exec, 1
    ds_write_b32 {ta}, {e0[2]} offset:{R1O + 4*272}
    s_mov_b32 {sEx[0]}, 0
    s_mov_b32 {sEx[1]}, 0x80000000
    s_mov_b64 exec, {sEx}
    ds_write_b64 {ta}, {e0.sub(0,2)} offset:56
    ds_write_b32 {ta}, {e0[1]} offset:{R1O + 60}
    s_mov_b64 exec, -1
    v_readlane_b32 {sK}, {e1[1]}, 63""")
    V.reset(kmark)
    TF = [V(4) for _ in range(17)]
    A2 = {d: V(8) for d in (2, 3, 4)}; A3 = {d: V(4) for d in (4, 5, 6, 7)}
    cacc = [V(4) for _ in range(8)]
    wacc = [V(4) for _ in range(6)]
    wop = [V(4) for _ in range(3)]
    NR = (256 - V.next) // 4
    uring = [V(4) for _ in range(NR)]
    def tread(s_):
        off = 16*(16 - s_); ad = vTA[0]
        if off >= 128: off -= 128; ad = vTA[1]
        return [f"ds_read2_b32 {TF[s_].sub(0,2)}, {ad} offset0:{off} offset1:{off+1}", f"ds_read2_b32 {TF[s_].sub(2,2)}, {ad} offset0:{off+2} offset1:{off+3}"]
    a2r = [f"ds_read_b64 {A2[d].sub(2*q,2)}, {vTA[2]} offset:{128*(d-2) + 8*q}" for d in (2, 3, 4) for q in range(4)]
    a3r = [f"ds_read2_b32 {A3[d].sub(2*q,2)}, {vTA[3]} offset0:{16*(d-4) + 2*q} offset1:{16*(d-4) + 2*q + 1}" for d in (4, 5, 6, 7) for q in range(2)]
    first_t = tread(0) + tread(8) + tread(16)
    later_t = tread(1) + tread(9) + a2r + a3r + [x for c in range(2, 8) for x in tread(c) + tread(c + 8)]
    for r in range(4): P(f"v_and_b32 {bx[4][r]}, {sK}, {bx[4][r]}")
    stamp(P, 5)
    uo = lambda c, b: 448 - 64*c + 512*b
    seen = set()
    def acc_mf(a_, A_, B_):
        c_ = cacc[a_] if a_ in seen else 0; seen.add(a_)
        return f"{MF} {cacc[a_]}, {A_}, {B_}, {c_}"
    items = []
    def dense(c, b):
        for i in range(3 if c == 0 else 2):
            if b + i <= 7: items.append((acc_mf(b + i, TF[c + 8*i], "{u}"), uo(c, b)))
    for b in range(8):
        dense(0, b)
        if b <= 3: items.append((acc_mf(b + 4, bx[4], "{u}"), uo(0, b)))
        cv = []
        if b <= 5:
            items.append((f"{MF} {wacc[0]}, {{u}}, {bx[0]}, 0", uo(0, b)))
            items.append((f"{MF} {wacc[1]}, {{u}}, {bx[1]}, 0", uo(0, b)))
            if b <= 3: items.append((f"{MF} {wacc[4]}, {{u}}, {bx[2]}, 0", uo(0, b)))
            items.append((f"{MF} {wacc[2]}, {{u}}, {bx[0]}, 0", uo(0, b) - 16))
            items.append((f"{MF} {wacc[3]}, {{u}}, {bx[1]}, 0", uo(0, b) - 16))
            if b <= 3: items.append((f"{MF} {wacc[5]}, {{u}}, {bx[3]}, 0", uo(0, b) - 16))
            for s_ in range(2):
                for jj in range(2):
                    j = 3 - 2*s_ - jj
                    cv.append(f"v_cvt_pk_bf16_f32 {wop[s_][2*jj]}, {wacc[0][j]}, {wacc[1][j]}")
            for s_ in range(2):
                for jj in range(2):
                    j = 3 - 2*s_ - jj
                    cv.append(f"v_cvt_pk_bf16_f32 {wop[s_][2*jj+1]}, {wacc[2][j]}, {wacc[3][j]}")
            if b <= 3:
                for q in range(4): cv.append(f"v_cvt_pk_bf16_f32 {wop[2][q]}, {wacc[4][3-q]}, {wacc[5][3-q]}")
        if b < 7:
            n0 = len(items)
            for bb in range(8): dense(b + 1, bb)
            fill = items[n0:]; del items[n0:]
            for i, it_ in enumerate(fill):
                items.append(it_)
                if i >= 2 and cv: items.append((cv.pop(0), None))
            assert not cv
        if b <= 5:
            for d in (2, 3, 4):
                if b + d <= 7:
                    for s_ in range(2): items.append((acc_mf(b + d, wop[s_], A2[d].sub(4*s_, 4)), None))
            for d in (4, 5, 6, 7):
                if b + d <= 7: items.append((acc_mf(b + d, wop[2], A3[d]), None))
    assert sum(1 for t, _ in items if t.startswith(MF)) == 202
    keys = []
    for t, kk in items:
        if kk is not None and (not keys or keys[-1] != kk): keys.append(kk)
    assert len(set(keys)) == len(keys)
    slot = {kk: uring[i % NR] for i, kk in enumerate(keys)}
    last = {kk: max(i for i, (t, k2) in enumerate(items) if k2 == kk) for kk in keys}
    P("@waitvm uT")
    for kk in keys[:2]: P(f"ds_read_b128 {slot[kk]}, {vU} offset:{kk}")
    for x in first_t: P(x)
    for kk in keys[2:NR]: P(f"ds_read_b128 {slot[kk]}, {vU} offset:{kk}")
    late = [g for j in range(o['n14'] + o['n15'], 11) for g in dma_wo(j)]
    for i in range(10):
        late.append(L(f"""s_add_u32 m0, {sKB}, {i*1024}
        s_add_u32 {sBase}, {sM0B}, {i*16384}
        s_and_b32 {sBase}, {sBase}, 0x1fffff
        buffer_load_dwordx4 {vWO2}, {srdWO}, {sBase} offen lds""", "wo"))
    if o.get('nolate'): late = []
    P(f"""s_add_u32 {sM0B}, {sRot}, 11
    s_lshl_b32 {sM0B}, {sM0B}, 17
    s_mul_i32 {sT}, {sLW}, {80*2048}
    s_add_u32 {sM0B}, {sM0B}, {sT}""")
    if o['gate']:
        for x in later_t: P(x)
        later_t = []
        P(f"@waitvm wo\nds_write_b32 {vLF}, {vOne}\n@waitlg")
        if o['gate'] == 2:
            for g in late: P.extend(g)
            late = []
        ldsspin(P, vLF, GATE - LF, vE, o['gatev'], 1)
    stamp(P, 6)
    nxt = NR; nm = 0; tdone = 0 if o['gate'] else None
    for i, (t, kk) in enumerate(items):
        P(t.replace("{u}", str(slot[kk])) if kk is not None else t)
        issued = False
        if kk is not None and last[kk] == i and nxt < len(keys):
            P(f"ds_read_b128 {slot[keys[nxt]]}, {vU} offset:{keys[nxt]}"); nxt += 1; issued = True
        if t.startswith(MF):
            nm += 1
            for _ in range(2 if nm <= 12 else 1):
                if later_t:
                    P(later_t.pop(0))
                    if not later_t: tdone = nm
            if nm == o['lf1'] and not o['gate']: P(f"@waitvm wo\nds_write_b32 {vLF}, {vOne}")
            if nm >= o['late0'] and (nm - o['late0']) % o['latestep'] == 0 and late:
                if len(late) == 10:
                    assert tdone is not None and nm > tdone
                    P(f"v_mov_b32 {vT}, {TF[15][3]}")
                P.extend(late.pop(0))
    stamp(P, 7)
    if late: P('@waitlg')
    for g in late: P.extend(g)
    P(f"""v_and_b32 {vT}, 15, {vL}
    v_lshlrev_b32 {vT}, 4, {vT}
    v_bfe_u32 {vT2}, {vL}, 4, 1
    v_lshl_add_u32 {vT}, {vT2}, 9, {vT}
    v_lshrrev_b32 {vT2}, 5, {vL}
    v_lshl_add_u32 {vT}, {vT2}, 8, {vT}
    s_lshl_b32 {sT}, {sCH}, 12
    s_add_u32 {sT}, {sT}, {AT}""")
    for Pi in range(4):
        d = TF[Pi]; a0, a1 = cacc[2*Pi], cacc[2*Pi+1]
        P(f"""v_cvt_pk_bf16_f32 {d[0]}, {a0[0]}, {a0[1]}
        v_cvt_pk_bf16_f32 {d[1]}, {a0[2]}, {a0[3]}
        v_cvt_pk_bf16_f32 {d[2]}, {a1[0]}, {a1[1]}
        v_cvt_pk_bf16_f32 {d[3]}, {a1[2]}, {a1[3]}
        v_permlane16_swap_b32 {d[0]}, {d[2]}
        v_permlane16_swap_b32 {d[1]}, {d[3]}
        """)
    for Pi in range(4):
        if not o.get('noat'): P(f"buffer_store_dwordx4 {TF[Pi]}, {vT}, {srdWS}, {sT} offen offset:{1024*Pi} sc1")
    P(f"""v_mov_b32 {vT2}, 2
    @waitvm wo
    ds_write_b32 {vLF}, {vT2}""")
    stamp(P, 8)
    P(f"""s_lshr_b32 {sT2}, {sCH}, 6
    s_lshl_b32 {sT2}, {sT2}, 4
    v_add_u32 {vT}, {sT2}, {vL}
    v_mul_u32_u24 {vT}, {FS}, {vT}
    v_add_u32 {vT}, {F3}, {vT}
    v_lshrrev_b32 {vT2}, 4, {vL}
    v_lshlrev_b32 {vAT[0]}, 12, {vT2}
    v_and_b32 {vAT[1]}, 7, {vL}
    v_xor_b32 {vT2}, {vT2}, {vAT[1]}
    v_lshl_add_u32 {vAT[0]}, {vT2}, 4, {vAT[0]}
    v_bfe_u32 {vT2}, {vL}, 3, 1
    v_lshl_add_u32 {vAT[0]}, {vT2}, 8, {vAT[0]}
    s_lshl_b32 {sT}, {sCT}, 18
    s_lshr_b32 {sT2}, {sMT2}, 1
    s_lshl_b32 {sT2}, {sT2}, 9
    s_add_u32 {sT}, {sT}, {sT2}
    s_and_b32 {sT2}, {sMT2}, 1
    s_lshl_b32 {sT2}, {sT2}, 7
    s_add_u32 {sT}, {sT}, {sT2}
    v_add_u32 {vAT[0]}, {sT}, {vAT[0]}
    v_xor_b32 {vAT[1]}, 64, {vAT[0]}
    s_waitcnt vmcnt(0)
    s_mov_b64 exec, 0xffff
    buffer_atomic_add {vOne}, {vT}, {srdWS}, 0 offen sc1
    s_mov_b64 exec, -1""")
    stamp(P, 9)
    if stamps: stamp(P, 10)
    P(f"s_cmp_lg_u32 {sLW}, 0\ns_cbranch_scc1 L_ldone")
    lfr = TF[4]
    P(f"s_sleep {o['pre3']}\ns_mov_b32 {sCnt}, 0")
    P.loop_begin("L_l3")
    P(f"""s_sleep {o['sl3']}
    s_mov_b64 exec, 1
    {atomic_read(vE, vC3)}
    ds_read_b128 {lfr}, {vZero} offset:{LF}
    s_add_u32 {sCnt}, {sCnt}, 1
    s_cmp_gt_u32 {sCnt}, {SPIN_G}
    s_waitcnt vmcnt(0) lgkmcnt(0)
    s_cbranch_scc1 L_l3d
    v_min_u32 {lfr[0]}, {lfr[0]}, {lfr[1]}
    v_min3_u32 {lfr[0]}, {lfr[0]}, {lfr[2]}, {lfr[3]}
    v_lshlrev_b32 {lfr[0]}, 5, {lfr[0]}
    v_min_u32 {lfr[0]}, {lfr[0]}, {vE}
    v_cmp_gt_u32 vcc, 64, {lfr[0]}
    s_cbranch_vccnz L_l3""")
    P.loop_end()
    P("L_l3d:\ns_mov_b64 exec, -1")
    stamp(P, 10)
    for i in range(16):
        if i % 4 == 0: P(f"s_mov_b32 m0, {U0 + USZ*(i>>2) + 512}")
        P(f"s_mov_b32 {sBase}, {AT + 16384*i - 1024*(i&3)}")
        P(f"buffer_load_dwordx4 {vAT[i&1]}, {srdWS}, {sBase} offen offset:{1024*(i&3)} sc1 lds")
    for r in range(4): P(f"v_mov_b32 {lfr[r]}, 3")
    P(f"""s_waitcnt vmcnt(0)
    ds_write_b128 {vZero}, {lfr} offset:{LF}
    s_waitcnt lgkmcnt(0)
    L_ldone:""")
    stamp(P, 11)
    if o.get('trace'):
        P(f"""s_lshl_b32 {sT}, s2, 2
        s_add_u32 {sT}, {sT}, {sLW}
        s_lshl_b32 {sT}, {sT}, 8
        s_add_u32 {sT}, {sT}, {STAMP_OFF + MB}
        v_lshl_add_u32 {vT}, {vL}, 2, {sT}
        buffer_store_dword {vTr}, {vT}, {srdWS}, 0 offen""")
    dump_stamps(P, vT, z4, 1)
    P("s_endpgm")
    loader, vhiL, shiL = P, V.hi, S.hi

    P = Prog()
    S.reset(smark); V = Alloc('v', 1, 256)
    srdOUT = S(4)
    sWM, sWN, sHD, sIt, sStage, sDelta, sBase, sI2, sEps, sL2E, sPst, sGr = [S() for _ in range(12)]
    sRetry = sI2
    sPC = S(2); sExZ = S(2); sExG = S(2); sO = [S(), S()]
    alloc_stamps(14)
    vT, vT2, vOne, vC1, vC2, vA1, vA2 = [V() for _ in range(7)]
    pr = [V(), V()]
    vXS, vXP, vPA, vZS, vZL, vS1W, vS1R, vS3W, vS3R, vS3FW, vS3FR, vOA = [V() for _ in range(12)]
    vOL, vGA, vLFa, vOut = [V() for _ in range(4)]
    vWB = [V() for _ in range(4)]; vAR = [V(), V()]
    selr = V(6); ones = V(4)
    pq = [V(4) for _ in range(4)]
    vGa, vGS = V(), V()
    cmark = V.mark()
    vRA = [V(), V()]; vRB = [V() for _ in range(4)]
    vGx, vGw, gx_, gw_ = V(), V(), V(), V()
    fa = [[V(4) for _ in range(4)] for _ in range(2)]
    fb = [[V(4) for _ in range(6)] for _ in range(2)]
    acc = [[V(4) for _ in range(6)] for _ in range(4)]
    vDum = V()
    P("L_compute:")
    role_now[0] = 'c'
    P(f"""s_lshr_b32 {sWM}, {sW}, 1
    s_and_b32 {sWN}, {sW}, 1
    s_lshl_b32 {sHD}, {sHP}, 1
    s_add_u32 {sHD}, {sHD}, {sWN}
    s_lshl_b32 {sT}, {sMT}, 1
    s_add_u32 {sT}, {sT}, {sWM}
    s_lshl_b32 {sT}, {sT}, 5
    s_add_u32 {sI2}, {sT}, {sHD}""")
    if o['codepf']:
        P(f"""s_getpc_b64 {sPC}
        L_pcref:
        s_sub_u32 {sPC[0]}, {sPC[0]}, L_pcref-{KNAME}
        s_subb_u32 {sPC[1]}, {sPC[1]}, 0
        s_lshr_b32 {sT}, s2, 3
        s_lshl_b32 {sT}, {sT}, 2
        s_add_u32 {sT}, {sT}, {sW}
        s_lshl_b32 {sT}, {sT}, 8
        v_lshl_add_u32 {vT}, {vL}, 2, {sT}
        v_min_u32 {vT}, L_codeend-{KNAME}-4, {vT}
        global_load_dword {vDum}, {vT}, {sPC}""")
    sent = fa[0][0]
    P(f"""s_lshl_b32 {sT}, {sHD}, 4
    v_add_u32 {vA1}, {sT}, {vL}
    v_mul_u32_u24 {vA1}, {FS}, {vA1}
    v_add_u32 {vA1}, {F1}, {vA1}
    s_add_u32 {sT}, {sT}, {sMT}
    s_mul_i32 {sT}, {sT}, {FS}
    s_add_u32 {sT}, {sT}, {F1}
    v_mov_b32 {vC1}, {sT}
    s_lshl_b32 {sT}, {sMT}, 1
    s_add_u32 {sT}, {sT}, {sWM}
    s_lshl_b32 {sT}, {sT}, 4
    v_add_u32 {vA2}, {sT}, {vL}
    v_mul_u32_u24 {vA2}, {FS}, {vA2}
    v_add_u32 {vA2}, {F2}, {vA2}
    s_lshl_b32 {sT}, {sMT2}, 1
    s_add_u32 {sT}, {sT}, {sWM}
    s_lshl_b32 {sT}, {sT}, 4
    s_add_u32 {sT}, {sT}, {sCT}
    s_mul_i32 {sT}, {sT}, {FS}
    s_add_u32 {sT}, {sT}, {F2}
    v_mov_b32 {vC2}, {sT}
    v_mov_b32 {vOne}, 1
    v_mov_b32 {vT2}, 0
    s_lshl_b32 {sT}, {sHD}, 1
    s_add_u32 {sT}, {sT}, {sWM}
    s_lshl_b32 {sT2}, {sT}, 14
    s_add_u32 {sT2}, {sT2}, {PART}
    v_lshl_add_u32 {vPA}, {vL}, 4, {sT2}
    s_lshl_b32 {sT}, {sT}, 4
    s_add_u32 {sT}, {sT}, {sMT}
    s_lshl_b32 {sT}, {sT}, 6
    s_add_u32 {sT}, {sT}, {ZP}
    v_add_u32 {vZS}, {sT}, {vL}
    s_lshl_b32 {sPst}, {sMT}, 10
    s_lshl_b32 {sT}, {sCT}, 4
    s_add_u32 {sT}, {sT}, {sMT2}
    s_mul_i32 {sT}, {sT}, {FS}
    s_add_u32 {sT}, {sT}, {F3}
    v_mov_b32 {vGa}, {sT}
    s_lshl_b32 {sT}, {sMT}, 4
    s_add_u32 {sT}, {sT}, {sHP}
    s_lshl_b32 {sT}, {sT}, 2
    s_add_u32 {sT}, {sT}, {sW}
    s_lshl_b32 {sT}, {sT}, 3
    s_add_u32 {sT}, {sT}, {GG}
    v_lshrrev_b32 {vT}, 5, {vL}
    v_lshl_add_u32 {vGS}, {vT}, 2, {sT}
    s_mov_b32 {sExZ[0]}, 0x00010001
    s_mov_b32 {sExZ[1]}, 0x00010001
    s_mov_b32 {sExG[0]}, 0x80000000
    s_mov_b32 {sExG[1]}, 0x80000000
    v_mov_b32 {sent[0]}, -1
    v_mov_b32 {sent[1]}, -1
    v_mov_b32 {sent[2]}, -1
    v_mov_b32 {sent[3]}, -1
    s_waitcnt lgkmcnt(0)""")
    pstamp(P, 2)
    srd(P, srdWS, pWS, 0x10000000); srd(P, srdOUT, pOUT, 4*MB)
    P(f"""buffer_store_dwordx4 {sent}, {vPA}, {srdWS}, {sPst} offen sc1
    s_mov_b64 exec, {sExZ}
    buffer_store_dwordx4 {sent}, {vZS}, {srdWS}, 0 offen sc1
    s_mov_b64 exec, 1
    buffer_store_dword {vT2}, {vC1}, {srdWS}, 0 offen sc1
    buffer_store_dword {vT2}, {vC2}, {srdWS}, 0 offen sc1
    buffer_store_dword {vT2}, {vGa}, {srdWS}, 0 offen sc1
    s_mov_b64 exec, {sExG}
    buffer_store_dword {sent[0]}, {vGS}, {srdWS}, 0 offen sc1
    s_mov_b64 exec, -1""")
    P(f"""s_lshl_b32 {sT}, {sW}, 9
    s_add_u32 m0, {sT}, {GWL}
    s_lshr_b32 {sT2}, {sHP}, 2
    s_add_u32 {sT2}, {sT2}, {sW}
    s_and_b32 {sT2}, {sT2}, 3
    s_lshl_b32 {sT2}, {sT2}, 9
    v_lshl_add_u32 {vT}, {vL}, 4, {sT2}
    s_mov_b64 exec, 0xffffffff
    global_load_lds_dwordx4 {vT}, {pGW}
    s_mov_b64 exec, -1""")
    P(f"""s_lshl_b32 {sT}, {sWM}, 13
    s_add_u32 {sT}, {sT}, {ST0}
    v_and_b32 {vT}, 15, {vL}
    v_lshl_add_u32 {vRA[0]}, {vT}, 7, {sT}
    v_bfe_u32 {vT}, {vL}, 1, 3
    v_lshrrev_b32 {vT2}, 4, {vL}
    v_xor_b32 {vT}, {vT}, {vT2}
    v_lshl_add_u32 {vRA[0]}, {vT}, 4, {vRA[0]}
    v_xor_b32 {vRA[1]}, 64, {vRA[0]}
    v_lshlrev_b32 {vRB[0]}, 10, {vT2}
    v_bfe_u32 {vT}, {vL}, 2, 2
    v_lshl_add_u32 {vRB[0]}, {vT}, 7, {vRB[0]}
    s_lshl_b32 {sT}, {sWN}, 1
    v_bfe_u32 {vT}, {vL}, 3, 2
    v_xor_b32 {vT}, {sT}, {vT}
    v_lshl_add_u32 {vRB[0]}, {vT}, 5, {vRB[0]}
    v_and_b32 {vT}, 3, {vL}
    v_lshl_add_u32 {vRB[0]}, {vT}, 3, {vRB[0]}
    v_add_u32 {vRB[0]}, {ST0 + ASZ}, {vRB[0]}
    v_xor_b32 {vRB[1]}, 32, {vRB[0]}
    s_lshl_b32 {sT}, {sWM}, 5
    v_xor_b32 {vRB[2]}, {sT}, {vRB[0]}
    v_xor_b32 {vRB[3]}, 32, {vRB[2]}
    s_lshl_b32 {sT}, {sHP}, 2
    s_add_u32 {sT}, {sT}, {sW}
    s_and_b32 {sT2}, {sT}, 7
    s_lshl_b32 {sT}, {sT}, 8
    s_add_u32 {sT}, {sT}, {ST0}
    v_lshrrev_b32 {vT}, 5, {vL}
    v_lshl_add_u32 {vGx}, {vT}, 7, {sT}
    v_bfe_u32 {vT}, {vL}, 2, 3
    v_xor_b32 {vT}, {sT2}, {vT}
    v_lshl_add_u32 {vGx}, {vT}, 4, {vGx}
    v_and_b32 {vT}, 3, {vL}
    v_lshl_add_u32 {vGx}, {vT}, 2, {vGx}
    v_and_b32 {vT}, 31, {vL}
    v_lshlrev_b32 {vGw}, 2, {vT}
    v_mov_b32 {vGa}, 0
    s_mov_b32 {sIt}, 0
    s_mov_b32 {sStage}, 0""")
    for row in acc:
        for t in row:
            for r in range(4): P(f"v_mov_b32 {t[r]}, 0")
    c1, c2 = fa[1][0][0], fa[1][0][1]
    P(f"""s_mov_b32 {sEps}, 0x358637bd
    s_mov_b32 {sL2E}, {LOG2E}
    s_and_b32 {sGr}, {sMT}, {7 if o['grot'] else 0}
    s_lshl_b32 {sGr}, {sGr}, 11
    s_lshl_b32 {sT}, {sW}, 11
    s_add_u32 {sT}, {sT}, {XS0}
    v_lshl_add_u32 {vXS}, {vL}, 4, {sT}
    s_xor_b32 {sT}, {sW}, 2
    s_lshl_b32 {sT}, {sT}, 11
    s_add_u32 {sT}, {sT}, {XS0}
    v_lshl_add_u32 {vXP}, {vL}, 4, {sT}
    s_lshl_b32 {sT}, {sW}, 2
    s_add_u32 {sT2}, {sT}, {S1F}
    v_mov_b32 {vS1W}, {sT2}
    v_xor_b32 {vS1R}, 8, {vS1W}
    s_add_u32 {sT2}, {sT}, {S3F}
    v_mov_b32 {vS3FW}, {sT2}
    v_xor_b32 {vS3FR}, 8, {vS3FW}
    s_lshl_b32 {sT}, {sW}, 10
    s_add_u32 {sT}, {sT}, {S3B}
    v_lshl_add_u32 {vS3W}, {vL}, 4, {sT}
    s_lshl_b32 {sT}, {sWN}, 10
    s_add_u32 {sT}, {sT}, {S3B}
    v_lshl_add_u32 {vS3R}, {vL}, 4, {sT}
    s_lshl_b32 {sT}, {sHD}, 11
    s_add_u32 {sT}, {sT}, {ZP}
    v_and_b32 {vT}, 15, {vL}
    v_lshl_add_u32 {vZL}, {vT}, 6, {sT}
    v_lshrrev_b32 {vT2}, 4, {vL}
    v_lshl_add_u32 {vZL}, {vT2}, 4, {vZL}
    v_lshlrev_b32 {vT2}, 2, {vT2}
    v_sub_u32 {vT}, {vT}, {vT2}
    v_mov_b32 {selr[0]}, 0
    v_mov_b32 {selr[1]}, 0
    v_mov_b32 {selr[4]}, 0
    v_mov_b32 {selr[5]}, 0
    v_mov_b32 {c1}, 0x3f80
    v_mov_b32 {c2}, 0x3f800000
    v_cmp_eq_u32 vcc, 0, {vT}
    v_cndmask_b32 {selr[2]}, 0, {c1}, vcc
    v_cmp_eq_u32 vcc, 1, {vT}
    v_cndmask_b32 {selr[2]}, {selr[2]}, {c2}, vcc
    v_cmp_eq_u32 vcc, 2, {vT}
    v_cndmask_b32 {selr[3]}, 0, {c1}, vcc
    v_cmp_eq_u32 vcc, 3, {vT}
    v_cndmask_b32 {selr[3]}, {selr[3]}, {c2}, vcc
    v_mov_b32 {ones[0]}, 0x3f803f80
    v_mov_b32 {ones[1]}, 0x3f803f80
    v_mov_b32 {ones[2]}, 0x3f803f80
    v_mov_b32 {ones[3]}, 0x3f803f80
    s_lshl_b32 {sT}, {sMT}, 1
    s_add_u32 {sT}, {sT}, {sWM}
    s_lshl_b32 {sT}, {sT}, 7
    s_add_u32 {sT}, {sT}, {sHD}
    s_lshl_b32 {sT}, {sT}, 10
    s_add_u32 {sT}, {sT}, {OF}
    v_lshl_add_u32 {vOA}, {vL}, 4, {sT}
    v_lshrrev_b32 {vT}, 2, {vL}
    v_lshlrev_b32 {vWB[0]}, 7, {vT}
    v_bfe_u32 {vT}, {vL}, 3, 2
    v_lshl_add_u32 {vWB[0]}, {vT}, 5, {vWB[0]}
    v_and_b32 {vT}, 3, {vL}
    v_lshl_add_u32 {vWB[0]}, {vT}, 3, {vWB[0]}
    v_add_u32 {vWB[0]}, {wo_addr(0)}, {vWB[0]}
    v_xor_b32 {vWB[1]}, 32, {vWB[0]}
    v_xor_b32 {vWB[2]}, 64, {vWB[0]}
    v_xor_b32 {vWB[3]}, 96, {vWB[0]}
    s_lshl_b32 {sT}, {sMT2}, 2
    s_add_u32 {sT}, {sT}, {sW}
    s_lshl_b32 {sT2}, {sT}, 16
    s_add_u32 {sT3}, {sT2}, {OF}
    v_lshl_add_u32 {vOL}, {vL}, 4, {sT3}
    s_lshl_b32 {sT3}, {sCT}, 7
    s_add_u32 {sT2}, {sT2}, {sT3}
    v_and_b32 {vT}, 15, {vL}
    v_lshl_add_u32 {vOut}, {vT}, 11, {sT2}
    v_bfe_u32 {vT2}, {vL}, 4, 1
    v_lshl_add_u32 {vOut}, {vT2}, 5, {vOut}
    v_lshrrev_b32 {vT2}, 5, {vL}
    v_lshl_add_u32 {vOut}, {vT2}, 4, {vOut}
    s_lshl_b32 {sT2}, {sT}, 7
    s_add_u32 {sT2}, {sT2}, {GG}
    v_lshl_add_u32 {vGA}, {vT}, 2, {sT2}
    v_mov_b32 {vLFa}, {LF}
    v_lshrrev_b32 {vT}, 2, {vL}
    v_lshlrev_b32 {vAR[0]}, 8, {vT}
    v_and_b32 {vT}, 7, {vT}
    s_lshl_b32 {sT}, {sW}, 1
    v_xor_b32 {vT}, {sT}, {vT}
    v_lshl_add_u32 {vAR[0]}, {vT}, 4, {vAR[0]}
    v_bfe_u32 {vT}, {vL}, 1, 1
    v_lshl_add_u32 {vAR[0]}, {vT}, 7, {vAR[0]}
    v_and_b32 {vT}, 1, {vL}
    v_lshl_add_u32 {vAR[0]}, {vT}, 3, {vAR[0]}
    v_add_u32 {vAR[0]}, {U0 + 512}, {vAR[0]}
    v_xor_b32 {vAR[1]}, 16, {vAR[0]}
    s_lshl_b32 {sRot}, {sRot}, 11""")
    pstamp(P, 3); pstamp(P, 4)
    P("s_waitcnt vmcnt(0)")
    pstamp(P, 5)
    P("s_barrier")
    def reads(ks, buf):
        ra = [L(f"ds_read_b128 {fa[buf][mi]}, {vRA[ks]} offset:{mi*2048}") for mi in range(4)]
        rb = []
        for ni in range(6):
            ad = vRB[(ni & 1) + (2 if ni >= 4 else 0)]
            for t in range(2):
                rb.append(L(f"ds_read_b64_tr_b16 {fb[buf][ni].sub(2*t,2)}, {ad} offset:{(ni>>1)*8192 + ks*4096 + t*512}"))
        return ra[:1] + rb + ra[1:]
    def mf1(buf, mi, ni):
        a_, b_ = (fb[buf][ni], fa[buf][mi]) if ni < 2 else (fa[buf][mi], fb[buf][ni])
        return L(f"{MF} {acc[mi][ni]}, {a_}, {b_}, {acc[mi][ni]}")
    def mfmas(buf, nis=range(6)):
        nis = list(nis)
        return [mf1(buf, mi, ni) for mi in range(4) for ni in (nis if mi % 2 == 0 else nis[::-1])]
    for g in reads(0, 0): P.extend(g)
    stamp(P, 1)
    if stamps and not o.get('pad'): P(f"s_memtime {st[12]}")
    P("s_waitcnt lgkmcnt(0)")
    P.loop_begin("L_gemm")
    m0_, m1_ = mfmas(0), mfmas(1)
    adv = L(f"""s_add_u32 {sStage}, {sStage}, 1
    s_mov_b32 {sDelta}, {SSZ}
    s_cmp_eq_u32 {sStage}, 3
    s_cselect_b32 {sDelta}, {(-2*SSZ) & 0xffffffff}, {sDelta}
    s_cselect_b32 {sStage}, 0, {sStage}""")
    adv2 = [L(f"v_add_u32 {r}, {sDelta}, {r}") for r in vRA + vRB]
    grd = lambda: one_by_one(f"ds_read_b32 {gx_}, {vGx}\nds_read_b32 {gw_}, {vGw} offset:{GWL}")
    gva = lambda: one_by_one(f"""v_lshlrev_b32 {vT}, 16, {gx_}
    v_lshlrev_b32 {vT2}, 16, {gw_}
    v_and_b32 {gx_}, 0xffff0000, {gx_}
    v_and_b32 {gw_}, 0xffff0000, {gw_}
    v_fmac_f32 {vGa}, {vT}, {vT2}
    v_fmac_f32 {vGa}, {gx_}, {gw_}""")
    P.extend(merge(m0_[:16], reads(1, 1)))
    P.extend(merge(m0_[16:18], grd()))
    P.extend(merge(m0_[18:20], [[x] for x in adv]))
    P.extend(merge(m0_[20:], adv2))
    P("s_waitcnt lgkmcnt(0)")
    P.extend(merge(m1_[:2], one_by_one(f"v_add_u32 {vGx}, {sDelta}, {vGx}\nv_add_u32 {vGw}, 128, {vGw}")))
    P("s_barrier")
    P.extend(merge(m1_[2:18], reads(0, 0)))
    P.extend(merge(m1_[18:], gva() + [L(f"s_add_u32 {sIt}, {sIt}, 1"), L(f"s_cmp_lt_u32 {sIt}, 15")]))
    P("s_waitcnt lgkmcnt(0)\ns_cbranch_scc1 L_gemm")
    P.loop_end()
    P.extend(merge(mfmas(0, range(2, 6)), reads(1, 1) + grd()))
    P(f"s_mov_b64 exec, 1\nds_add_u32 {vLFa}, {vOne} offset:{T15 - LF}\ns_mov_b64 exec, -1")
    P.extend(flat(mfmas(1, range(2, 6))[:8]) + merge(mfmas(1, range(2, 6))[8:], gva()))
    stamp(P, 2)
    if stamps and not o.get('pad'): P(f"s_memtime {st[13]}")
    if o['prio']: P(f"s_setprio {o['prio']}")
    tmp = [V() for _ in range(8)]
    pkf = [fb[0][2], fb[0][3]]; vf = [fb[0][4], fb[0][5]]
    kvt = [[pq[0], pq[1]], [pq[2], pq[3]]]; zt = [fb[1][2], fb[1][3]]
    def phi(tile, dst2):
        t0 = tmp[0:4]; t1 = tmp[4:8]
        for j in range(4): P(f"v_mul_f32 {t0[j]}, {sL2E}, {tile[j]}")
        for j in range(4): P(f"v_exp_f32_e64 {t0[j]}, {t0[j]} clamp\nv_max_f32 {t1[j]}, {sEps}, {tile[j]}")
        for j in range(4): P(f"v_add_f32 {t0[j]}, {t0[j]}, {t1[j]}")
        P(f"v_cvt_pk_bf16_f32 {dst2[0]}, {t0[0]}, {t0[1]}\nv_cvt_pk_bf16_f32 {dst2[1]}, {t0[2]}, {t0[3]}")
    for p in range(2):
        for d in range(2):
            for h in range(2): phi(acc[2*p+h][2+d], pkf[d].sub(2*h, 2))
            if d == 0:
                for e in range(2):
                    for h in range(2):
                        t = acc[2*p+h][4+e]
                        P(f"v_cvt_pk_bf16_f32 {vf[e][2*h]}, {t[0]}, {t[1]}\nv_cvt_pk_bf16_f32 {vf[e][2*h+1]}, {t[2]}, {t[3]}")
            for e in (1, 0): P(f"{MF} {kvt[d][e]}, {pkf[d]}, {vf[e]}, {kvt[d][e] if p else 0}")
            P(f"{MF} {zt[d]}, {pkf[d]}, {ones}, {zt[d] if p else 0}")
            if p == 1 and d == 1: P(f"ds_write_b128 {vXS}, {kvt[0][1]}")
    zf = fb[1][4]; pf = fb[1][5]
    qm = mfmas(0, range(2)) + mfmas(1, range(2))
    P.extend(flat(qm[:4]))
    P(f"""ds_write_b128 {vXS}, {kvt[1][1]} offset:1024
    ds_write_b32 {vS1W}, {vOne}
    v_cvt_pk_bf16_f32 {zf[0]}, {zt[0][0]}, {zt[0][1]}
    v_cvt_pk_bf16_f32 {zf[1]}, {zt[0][2]}, {zt[0][3]}
    v_cvt_pk_bf16_f32 {zf[2]}, {zt[1][0]}, {zt[1][1]}
    v_cvt_pk_bf16_f32 {zf[3]}, {zt[1][2]}, {zt[1][3]}""")
    def lds_pair_wait(vflag, d0, d1, vaddr, off1):
        l0, l1 = lab("pw"), lab("pwd")
        P(f"s_mov_b32 {sCnt}, 0")
        P.loop_begin(l0)
        P(f"""ds_read_b32 {vT}, {vflag}
        ds_read_b128 {d0}, {vaddr}
        ds_read_b128 {d1}, {vaddr} offset:{off1}
        s_add_u32 {sCnt}, {sCnt}, 1
        s_cmp_gt_u32 {sCnt}, {SPIN_L}
        s_waitcnt lgkmcnt(0)
        s_cbranch_scc1 {l1}
        v_cmp_ne_u32 vcc, 1, {vT}
        s_cbranch_vccnz {l0}""")
        P.loop_end()
        P(f"{l1}:")
    lds_pair_wait(vS1R, kvt[0][1], kvt[1][1], vXP, 1024)
    for d in range(2):
        for j in range(4): P(f"v_add_f32 {kvt[d][0][j]}, {kvt[d][0][j]}, {kvt[d][1][j]}")
        P(f"v_cvt_pk_bf16_f32 {pf[2*d]}, {kvt[d][0][0]}, {kvt[d][0][1]}\nv_cvt_pk_bf16_f32 {pf[2*d+1]}, {kvt[d][0][2]}, {kvt[d][0][3]}")
    P(f"""buffer_store_dwordx4 {pf}, {vPA}, {srdWS}, {sPst} offen sc1
    s_mov_b64 exec, {sExZ}
    buffer_store_dwordx4 {zf}, {vZS}, {srdWS}, 0 offen sc1
    s_mov_b64 exec, 0xffff
    buffer_atomic_add {vOne}, {vA1}, {srdWS}, 0 offen sc1
    s_mov_b64 exec, -1""")
    stamp(P, 3)
    P.extend(flat(qm[4:4 + o['p1at']]))
    P(f"s_mov_b64 exec, 1\n{atomic_read(pr[0], vC1)}\ns_mov_b64 exec, -1")
    P.extend(flat(qm[4 + o['p1at']:]))
    F0 = fa[0][0].idx
    parts = [R('v', F0 + 4*i, 4) for i in range(16)]
    zl = [acc[2][5], acc[3][5]]
    zs = R('v', acc[0][2].idx, 8)
    zb = acc[1][2]; sm = [acc[1][3], acc[2][2]]; kf = [acc[2][3], acc[3][2]]; pf = acc[3][3]
    den = [R('v', F0 + 64 + 4*i, 4) for i in range(4)]
    qphi = [(tt, d) for tt in range(4) for d in range(2)]
    for tt, d in qphi[:o['w1']]: phi(acc[tt][d], pq[tt].sub(2*d, 2))
    stamp(P, 4)
    lg = lab("gat")
    P(f"""s_mov_b32 {sRetry}, 0
    v_readfirstlane_b32 {sT}, {pr[0]}
    s_cmp_lt_u32 {sT}, 32
    s_cbranch_scc1 {lg}_slow
    {lg}:""")
    OOL(f"{lg}_slow:\ns_mov_b64 exec, 1")
    poll_cnt(OOL, vC1, pr, 32, o['sl1'], f"{lg}_ok")
    OOL(f"{lg}_ok:\ns_mov_b64 exec, -1\ns_branch {lg}")
    stamp(P, 5)
    P(f"""s_add_u32 {sRetry}, {sRetry}, 1
    s_cmp_lt_u32 {sRetry}, {SPIN_G}
    s_cselect_b64 {sEx}, -1, 0""")
    for i in range(2): P(f"buffer_load_dwordx4 {zl[i]}, {vZL}, {srdWS}, 0 offen offset:{1024*i} sc1")
    for p in range(16):
        if p % 2 == 0: P(f"s_add_u32 {sBase}, {sGr}, {p*1024}\ns_and_b32 {sBase}, {sBase}, 0x3fff")
        P(f"buffer_load_dwordx4 {parts[p]}, {vPA}, {srdWS}, {sBase} offen offset:{(p%2)*1024} sc1")
    for tt, d in qphi[o['w1']:]: phi(acc[tt][d], pq[tt].sub(2*d, 2))
    for d in range(4):
        P(f"""v_lshlrev_b32 {zs[2*d]}, 16, {zl[0][d]}
        v_and_b32 {zs[2*d+1]}, 0xffff0000, {zl[0][d]}
        v_lshlrev_b32 {tmp[0]}, 16, {zl[1][d]}
        v_and_b32 {tmp[1]}, 0xffff0000, {zl[1][d]}
        v_add_f32 {zs[2*d]}, {zs[2*d]}, {tmp[0]}
        v_add_f32 {zs[2*d+1]}, {zs[2*d+1]}, {tmp[1]}""")
    for sh in (8, 4, 2, 1):
        for j in range(8): P(f"v_add_f32_dpp {zs[j]}, {zs[j]}, {zs[j]} row_ror:{sh} row_mask:0xf bank_mask:0xf")
    for d in range(4): P(f"v_cvt_pk_bf16_f32 {zb[d]}, {zs[2*d]}, {zs[2*d+1]}")
    for tt in range(4): P(f"{MF} {den[tt]}, {zb}, {pq[tt]}, 0")
    for p in range(16):
        P(f"{MF} {sm[0]}, {selr.sub(2,4)}, {parts[p]}, {sm[0] if p else 0}")
        P(f"{MF} {sm[1]}, {selr.sub(0,4)}, {parts[p]}, {sm[1] if p else 0}")
        if p == 4:
            for tt in range(4): P(f"v_add_f32 {den[tt][0]}, {sEps}, {den[tt][0]}")
        if p == 5:
            for tt in range(4): P(f"v_rcp_f32 {den[tt][1]}, {den[tt][0]}")
    P(f"""v_cmp_u_f32 vcc, {sm[0][0]}, {den[0][0]}
    v_cvt_pk_bf16_f32 {pf[0]}, {sm[0][0]}, {sm[0][1]}
    v_cvt_pk_bf16_f32 {pf[1]}, {sm[0][2]}, {sm[0][3]}
    v_cvt_pk_bf16_f32 {pf[2]}, {sm[1][0]}, {sm[1][1]}
    v_cvt_pk_bf16_f32 {pf[3]}, {sm[1][2]}, {sm[1][3]}
    s_and_b64 vcc, vcc, {sEx}
    s_cbranch_scc1 {lg}""")
    P(f"""ds_write_b128 {vS3W}, {pf}
    ds_write_b32 {vS3FW}, {vOne}""")
    lds_pair_wait(vS3FR, kf[0], kf[1], vS3R, 2048)
    num = [[R('v', F0 + 8*tt + 4*e, 4) for e in range(2)] for tt in range(4)]
    for tt in range(4):
        for e in range(2): P(f"{MF} {num[tt][e]}, {kf[e]}, {pq[tt]}, 0")
    for tt in range(4):
        for e in range(2):
            for j in range(4): P(f"v_mul_f32 {num[tt][e][j]}, {num[tt][e][j]}, {den[tt][1]}")
        of = pq[tt]
        for e in range(2):
            P(f"v_cvt_pk_bf16_f32 {of[2*e]}, {num[tt][e][0]}, {num[tt][e][1]}\nv_cvt_pk_bf16_f32 {of[2*e+1]}, {num[tt][e][2]}, {num[tt][e][3]}")
        P(f"s_mov_b32 {sBase}, {tt*32768}\nbuffer_store_dwordx4 {of}, {vOA}, {srdWS}, {sBase} offen sc1")
    stamp(P, 6)
    P(f"ds_write_b32 {vS1W}, {vOne} offset:{GATE - S1F}")
    for ctl in ("row_shr:1 row_mask:0xf", "row_shr:2 row_mask:0xf", "row_shr:4 row_mask:0xf", "row_shr:8 row_mask:0xf", "row_bcast:15 row_mask:0xa"):
        P(f"v_add_f32_dpp {vGa}, {vGa}, {vGa} {ctl} bank_mask:0xf")
    bf16r(P, vGa, vGa)
    P(f"v_mul_f32 {vGa}, {LOG2E ^ 0x80000000}, {vGa}\nv_exp_f32 {vGa}, {vGa}\nv_add_f32 {vGa}, 1.0, {vGa}\nv_rcp_f32 {vGa}, {vGa}")
    bf16r(P, vGa, vGa)
    V.reset(cmark)
    gv = V(2); om = V(2); lf = V(4)
    wf = [[V(4) for _ in range(4)] for _ in range(2)]
    cc = [[V(4) for _ in range(4)] for _ in range(2)]
    ga = [[V(4) for _ in range(4)] for _ in range(2)]
    RING = o['ring']
    ring = [V(4) for _ in range(RING)]
    def wait_lf(level):
        l0, l1 = lab("lf"), lab("lfd")
        P(f"s_mov_b32 {sCnt}, 0")
        P.loop_begin(l0)
        P(f"""ds_read_b128 {lf}, {vLFa}
        s_add_u32 {sCnt}, {sCnt}, 1
        s_cmp_gt_u32 {sCnt}, {SPIN_L}
        s_waitcnt lgkmcnt(0)
        s_cbranch_scc1 {l1}
        v_min_u32 {lf[0]}, {lf[0]}, {lf[1]}
        v_min3_u32 {lf[0]}, {lf[0]}, {lf[2]}, {lf[3]}
        v_cmp_gt_u32 vcc, {level}, {lf[0]}
        s_cbranch_vccnz {l0}""")
        P.loop_end()
        P(f"{l1}:")
    def check_lf(level):
        l0 = lab("clf")
        P(f"""v_min_u32 {lf[0]}, {lf[0]}, {lf[1]}
        v_min3_u32 {lf[0]}, {lf[0]}, {lf[2]}, {lf[3]}
        v_cmp_gt_u32 vcc, {level}, {lf[0]}
        s_cbranch_vccnz {l0}_slow
        {l0}_back:""")
        OOL(f"{l0}_slow:\ns_mov_b32 {sCnt}, 0")
        OOL.loop_begin(f"{l0}_spin")
        OOL(f"""ds_read_b128 {lf}, {vLFa}
        s_add_u32 {sCnt}, {sCnt}, 1
        s_cmp_gt_u32 {sCnt}, {SPIN_L}
        s_waitcnt lgkmcnt(0)
        s_cbranch_scc1 {l0}_back
        v_min_u32 {lf[0]}, {lf[0]}, {lf[1]}
        v_min3_u32 {lf[0]}, {lf[0]}, {lf[2]}, {lf[3]}
        v_cmp_gt_u32 vcc, {level}, {lf[0]}
        s_cbranch_vccnz {l0}_spin""")
        OOL.loop_end()
        OOL(f"s_branch {l0}_back")
    def wreads(ks):
        j, hh = ks >> 1, ks & 1
        return [L(f"ds_read_b64_tr_b16 {wf[ks&1][c].sub(2*t,2)}, {vWB[c]} offset:{wo_addr(j) - wo_base(j) + hh*4096 + t*2048}") for c in range(4) for t in range(2)]
    wait_lf(1)
    KL2 = max(1, min(21, 2*(o['n14'] + o['n15']) - 1))
    for g in wreads(0): P.extend(g)
    P(f"""s_waitcnt vmcnt(0)
    s_mov_b64 exec, 0xffff
    buffer_atomic_add {vOne}, {vA2}, {srdWS}, 0 offen sc1
    s_mov_b64 exec, {sExG}
    buffer_store_dword {vGa}, {vGS}, {srdWS}, 0 offen sc1
    s_mov_b64 exec, 1""")
    stamp(P, 7)
    poll_cnt(P, vC2, pr, 32, o['sl2'], "L_c2d")
    P("L_c2d:\ns_mov_b64 exec, -1")
    stamp(P, 8)
    def oload(j):
        ks, tt = j >> 1, j & 1
        pre = ""
        if ks % 4 == 0:
            pre = (f"s_add_u32 {sO[0]}, {sRot}, {ks*1024}\ns_and_b32 {sO[0]}, {sO[0]}, 0x7fff\n" if tt == 0 else f"s_add_u32 {sO[1]}, {sO[0]}, 32768\n")
        return L(pre + f"buffer_load_dwordx4 {ring[j % RING]}, {vOL}, {srdWS}, {sO[tt]} offen offset:{(ks&3)*1024} {o.get('oflags', 'sc1')}")
    for j in range(RING): P.extend(oload(j))
    af = [[pq[2*tt + (c >> 1)].sub(2*(c & 1), 2) for c in range(4)] for tt in range(2)]
    gaw = []
    for tt in range(2):
        gaw += [[x] for x in L(f"v_sub_f32 {om[tt]}, 1.0, {gv[tt]}\nv_cvt_pk_bf16_f32 {om[tt]}, {om[tt]}, {om[tt]}\nv_lshlrev_b32 {om[tt]}, 16, {om[tt]}")]
        for c in range(4):
            t = ga[tt][c]; a2 = af[tt][c]
            gaw += [[x] for x in L(f"""v_lshlrev_b32 {t[0]}, 16, {a2[0]}
            v_and_b32 {t[1]}, 0xffff0000, {a2[0]}
            v_lshlrev_b32 {t[2]}, 16, {a2[1]}
            v_and_b32 {t[3]}, 0xffff0000, {a2[1]}""" + "".join(f"\nv_mul_f32 {t[j]}, {gv[tt]}, {t[j]}" for j in range(4)))]
    KA = o.get('ka', 24)
    for ks in range(32):
        m = [L(f"{MF} {cc[tt][c]}, {wf[ks&1][c]}, {ring[(2*ks+tt) % RING]}, {cc[tt][c] if ks else 0}") for tt in range(2) for c in range(4)]
        if ks < 31 and wo_base((ks+1) >> 1) != wo_base(ks >> 1):
            for r in vWB: P(f"v_add_u32 {r}, {(wo_base((ks+1) >> 1) - wo_base(ks >> 1)) & 0xffffffff}, {r}")
        gld = f"buffer_load_dword {gv[0]}, {vGA}, {srdWS}, 0 offen sc1\nbuffer_load_dword {gv[1]}, {vGA}, {srdWS}, 0 offen offset:64 sc1"
        if ks == 12: P(gld)
        if ks == KA:
            lgv = lab("gv")
            P(f"v_max_u32 {vT}, {gv[0]}, {gv[1]}\nv_cmp_eq_u32 vcc, -1, {vT}\ns_cbranch_vccnz {lgv}_slow\n{lgv}:")
            OOL(f"{lgv}_slow:\ns_mov_b32 {sCnt}, 0")
            OOL.loop_begin(f"{lgv}_spin")
            OOL(f"""{gld}
            s_add_u32 {sCnt}, {sCnt}, 1
            s_cmp_gt_u32 {sCnt}, {SPIN_G}
            s_waitcnt vmcnt(0)
            s_cbranch_scc1 {lgv}
            v_max_u32 {vT}, {gv[0]}, {gv[1]}
            v_cmp_eq_u32 vcc, -1, {vT}
            s_cbranch_vccnz {lgv}_spin""")
            OOL.loop_end()
            OOL(f"s_branch {lgv}")
        if ks in (KL2 - 1, KA - 1): P(f"ds_read_b128 {lf}, {vLFa}")
        if ks == KL2: check_lf(2)
        if ks == KA:
            check_lf(3)
            for tt in range(2):
                for c in range(4): P(f"ds_read_b64_tr_b16 {af[tt][c]}, {vAR[tt]} offset:{c*USZ}")
        rd = wreads(ks + 1) if ks < 31 else []
        if o.get('cnomf'):
            rd = []; m = [x if i % 4 == 0 else [] for i, x in enumerate(m)]
        ex = []
        if ks > KA:
            n = -(-len(gaw) // (32 - ks)); ex = gaw[:n]; del gaw[:n]
        for half in range(2):
            f_ = rd[4*half:4*half+4] + ex[half*((len(ex)+1)//2):(half+1)*((len(ex)+1)//2)]
            P.extend(merge(m[4*half:4*half+4], f_))
            if 2*ks + half + RING < 64 and not o.get('cnold'): P.extend(oload(2*ks + half + RING))
    stamp(P, 9)
    for tt in range(2):
        for cp in range(2):
            d = ring[2*tt + cp]
            for q in range(2):
                c = 2*cp + q; t = ga[tt][c]
                for j in range(4): P(f"v_fmac_f32 {t[j]}, {om[tt]}, {cc[tt][c][j]}")
                P(f"v_cvt_pk_bf16_f32 {d[2*q]}, {t[0]}, {t[1]}\nv_cvt_pk_bf16_f32 {d[2*q+1]}, {t[2]}, {t[3]}")
            P(f"""s_mov_b32 {sBase}, {tt*32768}
            v_permlane16_swap_b32 {d[0]}, {d[2]}
            v_permlane16_swap_b32 {d[1]}, {d[3]}
            buffer_store_dwordx4 {d}, {vOut}, {srdOUT}, {sBase} offen offset:{64*cp} {o.get("outflags","")}""")
    stamp(P, 10)
    if stamps:
        P("s_waitcnt vmcnt(0)"); stamp(P, 11)
    dump_stamps(P, vT, lf, 0)
    P("L_end:\ns_endpgm")
    OOL("L_codeend:")
    compute, vhiC, shiC = P, V.hi, S.hi

    hdr = open("gated_mix__ssm_conv_s4d__linear_attn_block__prompt.s.ref").read().split("; Override")[0] if o.get('hdr') else ""
    out = [hdr + "; @launch grid=(256,1,1) block=(512,1,1) lds=163840",
           '.amdgcn_target "amdgcn-amd-amdhsa--gfx950"', ".text", f".globl {KNAME}", ".p2align 8", f".type {KNAME},@function", f"{KNAME}:"]
    out += E.finalize() + loader.finalize() + compute.finalize() + OOL.finalize()
    out += ['.section .rodata,"a"', kernel_desc(KNAME, 256, 0, 102)]
    info = dict(vL=vhiL, vC=vhiC, sL=shiL, sC=shiC, nside=len(side))
    return "\n".join(out), info

if __name__ == "__main__":
    opts = dict(hdr=True); opts.update(eval(sys.argv[2]) if len(sys.argv) > 2 else {})
    txt, info = gen(stamps=opts.get('stamps', False), opts=opts)
    open(sys.argv[1], "w").write(txt)
    print(info)
```

```python
import sys, math
from asm import R, v, s, Alloc, kernel_desc
from prog import Prog, I, L, merge

KNAME = "gated_mix__ssm_conv_s4d__linear_attn_block__prompt_kernel"
MB = 1 << 20
UT, AT, OF, PART, ZP, GG = 0, 4*MB, 8*MB, 12*MB, 13*MB, 13*MB + 512*1024
F1, F2, F3, FU = 14*MB, 14*MB + 256*1024, 14*MB + 512*1024, 14*MB + 768*1024
FS = 128
STAMP_OFF = 200 << 20
ASZ, BSZ = 16384, 24576
SSZ = ASZ + BSZ
ST0 = 40960
U0, USZ = 0, 4608
XS0, S3B = 18432, 26624
KB0, KSZ = ST0, 10240
LF, S3F, S1F, T15, GATE = U0, U0 + 16, U0 + USZ, U0 + USZ + 16, U0 + 2*USZ
GWL = 30720
def wo_addr(j):
    return 81920 + 8192*j if j < 10 else 32768 + 8192*(j - 10)
def wo_base(j):
    return wo_addr(0) if j < 8 else (wo_addr(8) if j < 10 else wo_addr(10))
R1O, S2O, S3O = 1216, 2368, 2880
LOG2E = 0x3fb8aa3b
INV2PI = 0x3e22f983
SPIN_G, SPIN_L = 40000, 400000
MF = "v_mfma_f32_16x16x32_bf16"

def gen(stamps=False, opts=None):
    o = dict(swl2=False, sw={}, so_={}, pfe={0: [(1, 7)], 4: [(2, 7)], 8: [(3, 15)]}, spro=(), n0=8, b0=0, pfw=(0,1,2,3), poat=3, hoist=True, kstart=1, nbk=10, nbuntil=13, exfirst=False, pfat=(20,0,4,8), nb0=8, nset0=60, nset=80, maxsl=52, parat=0, ea=3, pre3=24, utd=(1,1,2,2), uts=(4,4,5,5), wt0=0.8, wt14=1.0, wt15=1.0, ring=8, at2=1, at3=1, ka=30, zatom=1, prio=1, codepf=True, pf=True, late0=50, latestep=6, rot=False, spec=False, grot=False, sl2=2, sl3=8, n14=2, n15=9, gate=0, gatev=1, p1at=4, w1=5, sl1=2, worot=0, fs2=64, lf1=3, slb=1, zat=4)
    o.update(opts or {})
    S = Alloc('s', 3, 102)
    sW = S()
    kp = R('s', 4, 16); kq = R('s', 20, 8); kr = R('s', 28, 4); S.next = 32
    pX, pLA, pAI, pCR, pCI, pLDT, pDS = [kp.sub(2*i, 2) for i in range(7)]
    pWQ, pWO, pGW, pOUT = [kq.sub(2*i, 2) for i in range(4)]
    pDBG, pWS = kr.sub(0, 2), kr.sub(2, 2)
    srdWS = S(4)
    sMT, sHP, sMT2, sCT, sT, sT2, sT3, sCnt, sRot = [S() for _ in range(9)]
    sEx = S(2)
    st = [S(2)] if stamps else None
    smark = S.mark()
    def alloc_stamps(n):
        if stamps:
            del st[1:]
            st.extend(S(2) for _ in range(n - 1))
    role_now = [None]
    def pstamp(P, i):
        if stamps and o.get('pro') and i in o['pro']: P(f"s_memrealtime {st[2 + o['pro'].index(i)]}")
    def stamp(P, i):
        if o.get('pro') and 2 <= i <= 3: return
        if o.get('pad'):
            if i == 0: P(f"s_memrealtime {st[0]}")
            elif role_now[0] == 'c' and i == o['pad'][0]:
                l0 = f"L_pad_{i}"
                P.loop_begin(l0)
                P(f"""s_memrealtime {st[1]}
                s_waitcnt lgkmcnt(0)
                s_sub_u32 {st[1][0]}, {st[1][0]}, {st[0][0]}
                s_cmp_lt_u32 {st[1][0]}, {o['pad'][1]*100}
                s_cbranch_scc1 {l0}""")
                P.loop_end()
            return
        if stamps: P(f"{'s_memtime' if o.get('cyc') else 's_memrealtime'} {st[i]}")
        if o.get('hold') == i and role_now[0] == 'c':
            for _ in range(8): P("s_sleep 64")
    def dump_stamps(P, vT, d, role):
        if not stamps or o.get('pad'): return
        if o.get('dbgst'):
            if role == 1: return
            P(f"s_waitcnt vmcnt(0) lgkmcnt(0)\ns_mov_b64 exec, 1\nv_mov_b32 {vT}, 0\ns_not_b32 {st[0][1]}, {st[0][0]}")
            P(f"v_mov_b32 {d[0]}, {st[0][1]}\nglobal_atomic_umax {vT}, {d[0]}, {pDBG} offset:4 sc1\ns_nop 1")
            for i in range(len(st)):
                P(f"v_mov_b32 {d[0]}, {st[i][0]}\nglobal_atomic_umax {vT}, {d[0]}, {pDBG} offset:{8+4*i} sc1\ns_nop 1")
            return
        P(f"""s_waitcnt vmcnt(0) lgkmcnt(0)
        s_lshl_b32 {sT}, s2, 3
        s_add_u32 {sT}, {sT}, {sW}
        s_lshl_b32 {sT}, {sT}, 7
        s_add_u32 {sT}, {sT}, {STAMP_OFF}
        v_mov_b32 {vT}, {sT}
        s_mov_b64 exec, 1""")
        for i in range(len(st)):
            P(f"""v_mov_b32 {d[0]}, {st[i][0]}
            v_mov_b32 {d[1]}, {st[i][1]}
            buffer_store_dwordx2 {d.sub(0,2)}, {vT}, {srdWS}, 0 offen offset:{8*i}
            s_nop 1""")
    def srd(P, r, p, size):
        P(f"s_mov_b32 {r[0]}, {p[0]}\ns_mov_b32 {r[1]}, {p[1]}\ns_mov_b32 {r[2]}, {size}\ns_mov_b32 {r[3]}, 0x20000")
    uid = [0]
    def lab(n): uid[0] += 1; return f"L_{n}_{uid[0]}"
    def poll_global(P, vaddr, vtmp, want, srdr, cmp='ne', sleep=0, atomic=False):
        l0, l1 = lab("poll"), lab("polld")
        P(f"s_mov_b32 {sCnt}, 0")
        P.loop_begin(l0)
        if sleep: P(f"s_sleep {sleep}")
        P(f"v_mov_b32 {vtmp}, 0\nbuffer_atomic_add {vtmp}, {vaddr}, {srdr}, 0 offen sc0 sc1" if atomic else f"buffer_load_dword {vtmp}, {vaddr}, {srdr}, 0 offen sc1")
        P(f"""s_add_u32 {sCnt}, {sCnt}, 1
        s_cmp_gt_u32 {sCnt}, {SPIN_G}
        s_waitcnt vmcnt(0)
        s_cbranch_scc1 {l1}
        v_cmp_{cmp}_u32 vcc, {want}, {vtmp}
        s_cbranch_vccnz {l0}""")
        P.loop_end()
        P(f"{l1}:")
    def atomic_read(r, vaddr): return f"v_mov_b32 {r}, 0\nbuffer_atomic_add {r}, {vaddr}, {srdWS}, 0 offen sc0 sc1"
    def poll_cnt(P, vaddr, r, want, sleep, done, first_issued=False):
        l0 = lab("pc")
        P(f"s_mov_b32 {sCnt}, 0")
        if not first_issued: P(atomic_read(r[0], vaddr))
        sl = f"s_sleep {sleep}" if sleep else ""
        P.loop_begin(l0)
        P(f"""{sl}
        {atomic_read(r[1], vaddr)}
        s_waitcnt vmcnt(1)
        v_cmp_gt_u32 vcc, {want}, {r[0]}
        s_cbranch_vccz {done}
        {sl}
        {atomic_read(r[0], vaddr)}
        s_add_u32 {sCnt}, {sCnt}, 1
        s_waitcnt vmcnt(1)
        v_cmp_gt_u32 vcc, {want}, {r[1]}
        s_cbranch_vccz {done}
        s_cmp_lt_u32 {sCnt}, {SPIN_G}
        s_cbranch_scc1 {l0}""")
        P.loop_end()
    def ldsspin(P, vaddr, off, vt, want, sleep):
        l0 = lab("go")
        P(f"s_mov_b32 {sCnt}, 0")
        P.loop_begin(l0)
        P(f"""ds_read_b32 {vt}, {vaddr} offset:{off}
        s_add_u32 {sCnt}, {sCnt}, 1
        s_cmp_gt_u32 {sCnt}, {SPIN_L}
        s_waitcnt lgkmcnt(0)
        s_cbranch_scc1 {l0}_d
        v_cmp_gt_u32 vcc, {want}, {vt}
        s_cbranch_vccz {l0}_d
        s_sleep {sleep}
        s_branch {l0}""")
        P.loop_end()
        P(f"{l0}_d:")
    def bf16r(P, dst, src):
        P(f"v_cvt_pk_bf16_f32 {dst}, {src}, {src}\nv_lshlrev_b32 {dst}, 16, {dst}")

    E = Prog()
    E(f"""s_cmp_ge_u32 s2, 256
    s_cbranch_scc1 L_end
    s_load_dwordx16 {kp}, s[0:1], 0
    s_load_dwordx8 {kq}, s[0:1], 64
    s_load_dwordx4 {kr}, s[0:1], 96""")
    stamp(E, 0)
    E(f"""v_lshrrev_b32 v1, 6, v0
    v_and_b32 v0, 63, v0
    s_and_b32 {sT}, s2, 7
    v_readfirstlane_b32 {sW}, v1
    s_lshr_b32 {sT2}, s2, 3
    s_and_b32 {sMT}, {sT}, 1
    s_lshl_b32 {sMT}, {sMT}, 3
    s_and_b32 {sT3}, {sT2}, 7
    s_add_u32 {sMT}, {sMT}, {sT3}
    s_lshr_b32 {sHP}, {sT}, 1
    s_lshl_b32 {sHP}, {sHP}, 2
    s_lshr_b32 {sT3}, {sT2}, 3
    s_add_u32 {sHP}, {sHP}, {sT3}
    s_and_b32 {sMT2}, {sT}, 3
    s_lshl_b32 {sMT2}, {sMT2}, 2
    s_and_b32 {sT3}, {sT2}, 3
    s_add_u32 {sMT2}, {sMT2}, {sT3}
    s_lshr_b32 {sCT}, {sT}, 2
    s_lshl_b32 {sCT}, {sCT}, 3
    s_lshr_b32 {sT3}, {sT2}, 2
    s_add_u32 {sCT}, {sCT}, {sT3}
    s_mul_i32 {sRot}, {sMT2}, {2*o['worot']}
    s_add_u32 {sRot}, {sRot}, {sCT}
    s_lshl_b32 {sRot}, {sRot}, 1
    s_and_b32 {sRot}, {sRot}, {15 if o['rot'] else 0}
    s_cmp_lt_u32 {sW}, 4
    s_cbranch_scc1 L_compute""")
    vL = v(0)

    P = Prog()
    S.reset(smark); V = Alloc('v', 1, 256)
    srdX, srdW, srdWO, srdXT, srdD = S(4), S(4), S(4), S(4), S(4)
    sLW, sM0A, sM0B, sCH, sKB, sUB, sBase, sPFx, sMask16, sWant, sKR, sSW, sSO, sSB = [S() for _ in range(14)]
    sDum = srdXT.sub(0, 2)
    soA = [S() for _ in range(4)]; soB = [S() for _ in range(6)]
    alloc_stamps(4)
    if stamps: st.extend([r.sub(2*i, 2) for r in (srdX, srdW, srdXT, srdD) for i in range(2)])
    flat = lambda gs: [x for g in gs for x in g]
    one_by_one = lambda txt, tag=None: [[x] for x in L(txt, tag)]
    vT, vT2 = V(), V()
    vAo = [V(), V()]; vBo = [V(), V()]
    vPF, vDum, vLdt, vDsk = V(), V(), V(), V()
    vPar = V(4)
    vUA, vUL, vC3, vZero, vE, vEA = [V() for _ in range(6)]
    vUD, vWO, vWO2, vU, vLF, vOne, vKR, vKX = [V() for _ in range(8)]
    vTA = [V() for _ in range(4)]; vAT = [vUA, vUL]
    vTr = V() if o.get('trace') else None
    bx = [V(4) for _ in range(5)]
    kmark = V.mark()
    def trace(i):
        if o.get('trace'): P(f"s_memtime {sEx}\ns_waitcnt lgkmcnt(0)\nv_writelane_b32 {vTr}, {sEx[0]}, {i}")
    P(f"""s_sub_u32 {sLW}, {sW}, 4
    v_lshrrev_b32 {vT}, 3, {vL}
    v_lshlrev_b32 {vAo[0]}, 11, {vT}
    v_mul_u32_u24 {vBo[0]}, 6144, {vT}
    v_lshrrev_b32 {vT}, 4, {vL}
    v_and_b32 {vT2}, 7, {vL}
    v_xor_b32 {vT2}, {vT2}, {vT}
    v_lshl_add_u32 {vAo[0]}, {vT2}, 4, {vAo[0]}
    v_and_b32 {vT}, 1, {vT}
    v_lshlrev_b32 {vT}, 1, {vT}
    v_and_b32 {vT2}, 7, {vL}
    v_xor_b32 {vT2}, {vT2}, {vT}
    v_lshl_add_u32 {vBo[0]}, {vT2}, 4, {vBo[0]}
    s_lshl_b32 {sT}, {sMT}, 18
    s_lshl_b32 {sT2}, {sLW}, 16
    s_add_u32 {sT}, {sT}, {sT2}
    v_add_u32 {vAo[0]}, {sT}, {vAo[0]}
    v_xor_b32 {vAo[1]}, 64, {vAo[0]}
    s_lshl_b32 {sT}, {sHP}, 7
    s_mul_i32 {sT2}, {sLW}, {2*8*6144}
    s_add_u32 {sT}, {sT}, {sT2}
    v_add_u32 {vBo[0]}, {sT}, {vBo[0]}
    v_xor_b32 {vBo[1]}, 64, {vBo[0]}
    s_lshl_b32 {sM0A}, {sLW}, 12
    s_lshl_b32 {sM0B}, {sLW}, 11
    s_add_u32 {sM0B}, {sM0B}, {ASZ}
    s_lshl_b32 {sCH}, s2, 2
    s_add_u32 {sCH}, {sCH}, {sLW}
    s_mov_b32 {srdX[2]}, {4*MB}
    s_mov_b32 {srdX[3]}, 0x20000
    s_mov_b32 {srdW[2]}, {6*MB}
    s_mov_b32 {srdW[3]}, 0x20000""")
    for i in range(4): P(f"s_mov_b32 {soA[i]}, {16384*i - 1024*i}")
    for i in range(6): P(f"s_mov_b32 {soB[i]}, {(i>>1)*2048 + (i&1)*(8*6144 - 1024)}")
    par_loads = L(f"""global_load_ushort {vLdt}, {vUL}, {pLDT}
    global_load_dword {vPar[0]}, {vE}, {pLA}
    global_load_dword {vPar[1]}, {vE}, {pAI}
    global_load_dword {vPar[2]}, {vE}, {pCR}
    global_load_dword {vPar[3]}, {vE}, {pCI}
    global_load_ushort {vDsk}, {vUL}, {pDS}""")
    P(f"""s_and_b32 {sKR}, {sHP}, 12
    s_lshl_b32 {sT}, {sKR}, 7
    s_mul_i32 {sT2}, {sKR}, {64*6144}
    s_waitcnt lgkmcnt(0)
    s_add_u32 {srdX[0]}, {pX[0]}, {sT}
    s_addc_u32 {srdX[1]}, {pX[1]}, 0
    s_add_u32 {srdW[0]}, {pWQ[0]}, {sT2}
    s_addc_u32 {srdW[1]}, {pWQ[1]}, 0""")
    pstamp(P, 2)
    def dma_tile(t):
        base = ST0 + (t % 3) * SSZ; tag = f"t{t}"
        g = []
        for i in range(4):
            pre = L(f"s_add_u32 m0, {sM0A}, {base}") if i == 0 else []
            g.append(pre + L(f"buffer_load_dwordx4 {vAo[i&1]}, {srdX}, {soA[i]} offen offset:{1024*i} lds", tag))
        for i in range(6):
            pre = L(f"s_add_u32 m0, {sM0B}, {base + (i>>1)*8192}") if (i & 1) == 0 else []
            g.append(pre + L(f"buffer_load_dwordx4 {vBo[i&1]}, {srdW}, {soB[i]} offen offset:{1024*(i&1)} lds", tag))
        g[-1] = g[-1] + L(f"""s_add_u32 {srdX[0]}, {srdX[0]}, 128
        s_addc_u32 {srdX[1]}, {srdX[1]}, 0
        s_add_u32 {srdW[0]}, {srdW[0]}, {64*6144}
        s_addc_u32 {srdW[1]}, {srdW[1]}, 0""")
        if t in (3, 7, 11):
            g[-1] = g[-1] + L(f"""s_cmp_eq_u32 {sKR}, {15 - t}
            s_cselect_b64 {srdX.sub(0,2)}, {pX}, {srdX.sub(0,2)}
            s_cselect_b64 {srdW.sub(0,2)}, {pWQ}, {srdW.sub(0,2)}""")
        return g
    srdPF = srdWO
    def pf(i, mask):
        if not o['pf']: return []
        return L(f"""s_add_u32 {sBase}, {sKR}, {4*i}
        s_and_b32 {sBase}, {sBase}, 15
        s_lshl_b32 {sPFx}, {sBase}, 7
        s_add_u32 {sPFx}, {sPFx}, 384
        s_bitcmp1_b32 {sBase}, 2
        s_cselect_b32 {sPFx}, 0x7ff00000, {sPFx}
        s_mul_i32 {sBase}, {sBase}, {64*6144}
        s_cmp_eq_u32 {sLW}, 3
        s_cselect_b32 {sPFx}, 0, {sPFx}
        s_bitcmp0_b32 {sLW}, 0
        s_cselect_b32 {sPFx}, {sBase}, {sPFx}
        s_mov_b32 {sBase}, {mask}
        s_bitcmp1_b32 {sBase}, {sLW}
        s_cselect_b32 {sPFx}, {sPFx}, 0x7ff00000
        buffer_load_dword {vDum}, {vPF}, {srdPF}, {sPFx} offen""", "pf")
    t0_ = dma_tile(0)
    if o.get('ld0'): P(f"s_sleep {o['ld0']}")
    P.extend(flat(t0_[:o['n0']]))
    t0_rest = t0_[o['n0']:]
    pstamp(P, 3)
    if o['pf']:
        P(f"""s_and_b32 {sT}, {sMT}, 7
        s_mul_i32 {sT}, {sT}, {32*6144}
        s_and_b32 {sT2}, {sHP}, 3
        s_lshl_b32 {sT3}, {sT2}, 11
        s_add_u32 {sT}, {sT}, {sT3}
        s_or_b32 {sT3}, {sHP}, 3
        s_lshl_b32 {sT3}, {sT3}, 7
        s_add_u32 {sT}, {sT}, {sT3}
        v_and_b32 {vT}, 31, {vL}
        v_mul_u32_u24 {vPF}, 6144, {vT}
        v_add_u32 {vPF}, {sT}, {vPF}
        s_and_b32 {sT}, {sHP}, 7
        s_cmp_lt_u32 {sT}, 3
        s_cselect_b32 {srdPF[2]}, {6*MB if 0 in o['pfw'] else 0}, 0
        s_mov_b64 {srdPF.sub(0,2)}, {pWQ}
        s_mov_b32 {srdPF[3]}, 0x20000
        s_cmp_eq_u32 {sLW}, 0
        s_cbranch_scc1 L_pfset
        s_lshl_b32 {sT}, {sMT}, 2
        s_add_u32 {sT}, {sT}, {sT2}
        s_mul_i32 {sT3}, {sT}, {4*6144}
        s_lshl_b32 {sPFx}, {sKR}, 7
        s_add_u32 {sT3}, {sT3}, {sPFx}
        v_lshrrev_b32 {vT2}, 4, {vL}
        v_mul_u32_u24 {vPF}, 6144, {vT2}
        v_bfe_u32 {vT2}, {vL}, 2, 2
        v_min_u32 {vT2}, 2, {vT2}
        v_lshl_add_u32 {vPF}, {vT2}, 11, {vPF}
        v_and_b32 {vT2}, 3, {vL}
        v_lshl_add_u32 {vPF}, {vT2}, 7, {vPF}
        v_add_u32 {vPF}, {sT3}, {vPF}
        s_mov_b32 {srdPF[2]}, {6*MB if 2 in o['pfw'] else 0}
        s_cmp_eq_u32 {sLW}, 2
        s_cbranch_scc1 L_pfset
        s_lshl_b32 {sT}, {sT}, 16
        v_lshl_add_u32 {vPF}, {vT}, 11, {sT}
        s_mov_b64 {srdPF.sub(0,2)}, {pX}
        s_mov_b32 {srdPF[2]}, {4*MB if 1 in o['pfw'] else 0}
        s_cmp_eq_u32 {sLW}, 1
        s_cbranch_scc1 L_pfset
        s_lshl_b32 {sT}, s2, 13
        v_lshl_add_u32 {vPF}, {vL}, 7, {sT}
        s_mov_b64 {srdPF.sub(0,2)}, {pWO}
        s_mov_b32 {srdPF[2]}, {2*MB if 3 in o['pfw'] else 0}
        L_pfset:""")
    side = []
    def G(txt, tag=None): side.extend(one_by_one(txt, tag))
    vSpare = V(1, 2)
    FV = [[None] + [V() for _ in range(31)] for _ in range(2)]
    his = list(range(9)) + [256, 258, 260, 262, 264, 516, 520, 772, 776, 1032, 1288, 1544, 1800]
    EV = [{h: V() for h in his} for _ in range(2)]
    fA = V(32); xo = fA.sub(0, 16); vUR = [fA[16 + i] for i in range(4)]
    tmark = V.mark()
    vDt = V()
    al, be, cr, ci, ta, tb_ = [V() for _ in range(6)]
    W = {p: (V(), V(), V()) for p in (1, 2, 8, 256)}
    xa, xb, xc, xd = (V(), V()), (V(), V()), (V(), V()), (V(), V())
    UTL = XS0
    G(f"""s_mov_b32 {srdWS[0]}, {pWS[0]}
    s_mov_b32 {srdWS[1]}, {pWS[1]}
    s_mov_b32 {srdWS[2]}, 0x10000000
    s_mov_b32 {srdWS[3]}, 0x20000
    s_mul_i32 {sKB}, {sLW}, {KSZ}
    s_add_u32 {sKB}, {sKB}, {KB0}
    s_mul_i32 {sUB}, {sLW}, {USZ}
    s_add_u32 {sUB}, {sUB}, {U0}
    v_lshrrev_b32 {vT}, 4, {vL}
    v_lshlrev_b32 {vUR[0]}, 10, {vT}
    v_bfe_u32 {vT2}, {vL}, 2, 2
    v_lshl_add_u32 {vUR[0]}, {vT2}, 7, {vUR[0]}
    v_lshlrev_b32 {vUA}, 14, {vT2}
    v_lshl_add_u32 {vUA}, {vT}, 6, {vUA}
    v_and_b32 {vT}, 1, {vT}
    v_lshl_add_u32 {vUR[0]}, {vT}, 6, {vUR[0]}
    v_bfe_u32 {vT}, {vL}, 1, 1
    v_bfe_u32 {vT2}, {vL}, 3, 1
    v_xor_b32 {vT}, {vT}, {vT2}
    v_lshl_add_u32 {vUR[0]}, {vT}, 4, {vUR[0]}
    v_and_b32 {vT}, 1, {vL}
    v_lshl_add_u32 {vUR[0]}, {vT}, 3, {vUR[0]}
    v_and_b32 {vT}, 3, {vL}
    v_lshl_add_u32 {vUA}, {vT}, 4, {vUA}
    v_lshlrev_b32 {vEA}, 6, {vT}
    s_and_b32 {sT}, {sHP}, 3
    s_mul_i32 {sT2}, {sT}, 43
    s_lshr_b32 {sT2}, {sT2}, 7
    s_mul_i32 {sT2}, {sT2}, 3
    s_sub_u32 {sT}, {sT}, {sT2}
    s_mul_i32 {sT}, {sT}, {SSZ}
    s_add_u32 {sT}, {sT}, {sM0A}
    s_add_u32 {sT}, {sT}, {ST0}
    v_add_u32 {vUR[0]}, {sT}, {vUR[0]}
    v_xor_b32 {vUR[1]}, 32, {vUR[0]}
    v_xor_b32 {vUR[2]}, 64, {vUR[0]}
    v_xor_b32 {vUR[3]}, 96, {vUR[0]}
    s_lshl_b32 {sT}, {sHP}, 18
    s_lshl_b32 {sT2}, {sMT}, 10
    s_add_u32 {sT}, {sT}, {sT2}
    s_lshl_b32 {sT2}, {sLW}, 8
    s_add_u32 {sT}, {sT}, {sT2}
    v_add_u32 {vUA}, {sT}, {vUA}
    s_lshl_b32 {sT}, {sCT}, 4
    s_add_u32 {sT}, {sT}, {sMT2}
    s_mul_i32 {sT}, {sT}, {FS}
    s_add_u32 {sT}, {sT}, {F3}
    v_mov_b32 {vC3}, {sT}
    v_mov_b32 {vZero}, 0
    s_lshl_b32 {sT}, s2, 14
    s_lshl_b32 {sT2}, {sLW}, 4
    s_add_u32 {sT}, {sT}, {sT2}
    v_lshl_add_u32 {vUD}, {vL}, 6, {sT}
    v_lshrrev_b32 {vT}, 3, {vL}
    v_lshlrev_b32 {vWO2}, 11, {vT}
    v_lshrrev_b32 {vT}, 4, {vL}
    v_lshlrev_b32 {vT}, 1, {vT}
    v_and_b32 {vT2}, 7, {vL}
    v_xor_b32 {vT}, {vT}, {vT2}
    v_lshl_add_u32 {vWO2}, {vT}, 4, {vWO2}
    s_lshl_b32 {sT}, {sCT}, 7
    v_add_u32 {vWO2}, {sT}, {vWO2}
    s_lshl_b32 {sT}, {sLW}, 15
    v_add_u32 {vWO}, {sT}, {vWO2}
    v_and_b32 {vT}, 15, {vL}
    v_lshrrev_b32 {vT2}, 4, {vL}
    v_lshlrev_b32 {vU}, 5, {vT}
    v_lshl_add_u32 {vU}, {vT2}, 4, {vU}
    s_add_u32 {sT}, {sUB}, 32
    v_add_u32 {vU}, {sT}, {vU}
    v_lshlrev_b32 {al}, 3, {vT2}
    v_sub_u32 {al}, {vT}, {al}
    v_lshlrev_b32 {vTA[2]}, 2, {vT2}
    v_sub_u32 {vTA[2]}, {vT}, {vTA[2]}
    v_lshlrev_b32 {vTA[3]}, 2, {vTA[2]}
    s_add_u32 {sT}, {sKB}, {S3O + 64 - 268 + 256}
    v_add_u32 {vTA[3]}, {sT}, {vTA[3]}
    v_lshlrev_b32 {vTA[2]}, 3, {vTA[2]}
    s_add_u32 {sT}, {sKB}, {S2O + 128 - 280 + 256}
    v_add_u32 {vTA[2]}, {sT}, {vTA[2]}
    v_lshlrev_b32 {vTA[0]}, 4, {vT2}
    v_lshrrev_b32 {vT2}, 1, {vT}
    v_lshlrev_b32 {vT2}, 2, {vT2}
    v_sub_u32 {vTA[0]}, {vTA[0]}, {vT2}
    v_and_b32 {vT}, 1, {vT}
    v_xor_b32 {vT}, 1, {vT}
    v_mul_u32_u24 {vT}, {R1O+4}, {vT}
    v_add_u32 {vTA[0]}, {vTA[0]}, {vT}
    s_add_u32 {sT}, {sKB}, {4*(263-256)}
    v_add_u32 {vTA[0]}, {sT}, {vTA[0]}
    v_add_u32 {vTA[1]}, 512, {vTA[0]}
    s_lshl_b32 {sT}, {sLW}, 2
    s_add_u32 {sT}, {sT}, {LF}
    v_mov_b32 {vLF}, {sT}
    v_mov_b32 {vOne}, 1
    v_and_b32 {vT}, 31, {vL}
    v_mul_u32_u24 {vKR}, 272, {vT}
    v_lshrrev_b32 {vT}, 5, {vL}
    v_lshl_add_u32 {vKR}, {vT}, 4, {vKR}
    v_add_u32 {vKR}, {sKB}, {vKR}
    v_lshlrev_b32 {vT}, 4, {vL}
    v_sub_u32 {vKX}, 1072, {vT}
    v_add_u32 {vKX}, {sKB}, {vKX}
    s_mov_b32 {sMask16}, 0xffff""")
    side[:0] = one_by_one(f"""s_and_b32 {sT}, {sHP}, 3
    s_lshl_b32 {sT2}, {sMT}, 2
    s_add_u32 {sT}, {sT}, {sT2}
    s_and_b32 {sT}, {sT}, {31 if o['swl2'] else 63}
    s_mul_i32 {sSW}, {sT}, {6144 * (2 if o['swl2'] else 1)}
    s_add_u32 {sT}, {sKR}, {sLW}
    s_lshl_b32 {sT}, {sT}, 7
    s_add_u32 {sSW}, {sSW}, {sT}
    s_lshl_b32 {sSO}, {sCH}, 11""")
    for bi, (start, width, val) in enumerate([(11, 3, 0x3f803f80), (6, 5, 0x3f803f80), (5, 7, 0x3f803f80), (4, 9, 0x3f803f80), (12, 2, None)]):
        G(f"""v_add_u32 {be}, {start + 16}, {al}
        v_mov_b32 {cr}, {(1 << width) - 1}
        v_med3_i32 {be}, {be}, 0, 31
        v_lshlrev_b32 {be}, {be}, {cr}""")
        for d in range(4):
            G(f"""v_bfe_i32 {ta}, {be}, {16 + 2*d}, 1
            v_bfe_i32 {tb_}, {be}, {17 + 2*d}, 1
            v_bfi_b32 {bx[bi][d]}, {sMask16}, {ta}, {tb_}""")
            if val: G(f"v_and_b32 {bx[bi][d]}, {val}, {bx[bi][d]}")
    n_setup = len(side)
    G(f"""v_lshlrev_b32 {vDt}, 16, {vLdt}
    v_mul_f32 {vDt}, {LOG2E}, {vDt}
    v_exp_f32 {vDt}, {vDt}
    v_lshlrev_b32 {vDsk}, 16, {vDsk}
    v_cvt_pk_bf16_f32 {vDt}, {vDt}, {vDt}
    v_lshlrev_b32 {vDt}, 16, {vDt}""")
    def put(r, x, neg): G(f"v_cvt_pk_bf16_f32 {r}, {x[0]}, {'-' if neg else ''}{x[1]}")
    def cmul(y, x, w):
        G(f"""v_mul_f32 {y[0]}, {x[1]}, {w[2]}
        v_mul_f32 {y[1]}, {x[1]}, {w[0]}
        v_fmac_f32 {y[0]}, {x[0]}, {w[0]}
        v_fmac_f32 {y[1]}, {x[0]}, {w[1]}""")
    rho = lambda r, h: 8*(r >> 2) + 4*h + (r & 3)
    rows = {}
    def addrow(hi, r, h): rows.setdefault(hi, []).append(rho(r, h))
    for r in range(9): addrow(r, r, 0)
    for r, off in enumerate([0, 0, 2, 4, 4, 4, 6, 8, 8]): addrow(256 + off, r, 1)
    for h in range(2):
        addrow(516 + 256*h, 9, h); addrow(520 + 256*h, 10, h)
        addrow(1032 + 256*h, 11, h); addrow(1544 + 256*h, 12, h)
    assert sorted(rows) == sorted(his)
    import struct
    f2u = lambda x: struct.unpack('<I', struct.pack('<f', x))[0]
    for st_ in range(2):
        unp = (lambda d, x: f"v_lshlrev_b32 {d}, 16, {x}") if st_ == 0 else (lambda d, x: f"v_and_b32 {d}, 0xffff0000, {x}")
        G(f"""{unp(al, vPar[0])}
        v_mul_f32 {al}, {LOG2E}, {al}
        v_exp_f32 {al}, {al}
        {unp(be, vPar[1])}
        {unp(cr, vPar[2])}
        v_cvt_pk_bf16_f32 {al}, {al}, {al}
        {unp(ci, vPar[3])}
        v_lshlrev_b32 {al}, 16, {al}
        v_mul_f32 {al}, {al}, {vDt}
        v_mul_f32 {be}, {be}, {vDt}
        v_mul_f32 {cr}, {cr}, {vDt}
        v_mul_f32 {ci}, {ci}, {vDt}
        v_mul_f32 {al}, {LOG2E ^ 0x80000000}, {al}
        v_mul_f32 {be}, {INV2PI}, {be}
        v_add_f32 {cr}, {cr}, {cr}
        v_add_f32 {ci}, {ci}, {ci}""")
        for p in (8, 1, 256):
            w = W[p]
            G(f"""v_mul_f32 {ta}, {f2u(float(p))}, {al}
            v_mul_f32 {tb_}, {f2u(float(p))}, {be}
            v_exp_f32 {ta}, {ta}
            v_fract_f32 {tb_}, {tb_}
            v_cos_f32 {w[0]}, {tb_}
            v_sin_f32 {w[1]}, {tb_}
            v_mul_f32 {w[0]}, {ta}, {w[0]}
            v_mul_f32 {w[1]}, {ta}, {w[1]}
            v_sub_f32 {w[2]}, 0, {w[1]}""")
        cmul(W[2], W[1], W[1]); G(f"v_sub_f32 {W[2][2]}, 0, {W[2][1]}")
        put(FV[st_][1], W[8], False)
        cur = W[8]
        for j in range(2, 32):
            nx = xa if cur is not xa else xb
            cmul(nx, cur, W[8]); put(FV[st_][j], nx, False); cur = nx
        base = (cr, ci); put(EV[st_][0], base, True)
        def chain(b, hi0, step, n):
            cur = b
            for k in range(1, n):
                nx = xa if cur is not xa else xb
                cmul(nx, cur, W[step]); put(EV[st_][hi0 + step*k], nx, True); cur = nx
        chain(base, 0, 1, 9)
        cmul(xc, base, W[256]); put(EV[st_][256], xc, True)
        cmul(xa, xc, W[2]); put(EV[st_][258], xa, True)
        cmul(xd, xa, W[2]); put(EV[st_][260], xd, True)
        cmul(xa, xd, W[2]); put(EV[st_][262], xa, True)
        cmul(xc, xa, W[2]); put(EV[st_][264], xc, True)
        chain(xd, 260, 256, 3)
        chain(xc, 264, 256, 7)
    if o.get('nokgen'): side = side[:n_setup]
    pos = [0]
    def take_n(n):
        r = side[pos[0]:pos[0] + n]; pos[0] += len(r); return r
    t1 = dma_tile(1); nb0 = o['nb0']
    assert 60 <= o['nset0'] + o['nset'] <= n_setup
    for bt, mk in o['pfe'].get(-2, ()): P.extend(pf(bt, mk))
    P.extend(flat(take_n(o['nset0'])))
    P.extend(merge(t0_rest + [pf(bt, mk) for bt, mk in o['pfe'].get(-1, ())] + t1[:nb0], take_n(o['nset'])))
    pstamp(P, 4)
    P("@waitvm t0")
    pstamp(P, 5)
    P("s_barrier")
    trace(0)
    stamp(P, 1)
    def ut_rd(it):
        l0 = lab("utr")
        P(f"s_and_b32 {sBase}, {sHP}, 3\ns_cmp_lg_u32 {sBase}, {it}\ns_cbranch_scc1 {l0}")
        for c in range(4):
            for t in range(2): P(f"ds_read_b64_tr_b16 {xo.sub(4*c + 2*t, 2)}, {vUR[c ^ t]} offset:{512*t}")
        P(f"s_waitcnt lgkmcnt(0)\n{l0}:")
    ut_st = [L(f"s_mov_b32 {sBase}, {UT + c*65536}\nbuffer_store_dwordx4 {xo.sub(4*c,4)}, {vUA}, {srdWS}, {sBase} offen sc1", "uts") for c in range(4)]
    zero_pad = L(f"""s_mov_b32 m0, {sUB}
    s_mov_b32 {sBase}, 0x7ff00000
    s_mov_b64 exec, 0xffffffff
    buffer_load_dwordx4 {vUD}, {srdWS}, {sBase} offen lds
    s_mov_b64 exec, -1""")
    extra = {it: [] for it in range(14)}
    if not o.get('nout'):
        for i, it in enumerate(o['uts']): extra[it].append(ut_st[i])
    par_grp = (L(f"s_lshl_b32 {sBase}, {sCH}, 8\nv_lshl_add_u32 {vE}, {vL}, 2, {sBase}\ns_lshl_b32 {sBase}, {sCH}, 1\nv_mov_b32 {vUL}, {sBase}") + par_loads)
    extra[11].append(zero_pad)
    EA, EC = o['uts'][-1] + o['ea'], 13
    rest = len(side) - n_setup
    wts = [0.0 if it < o['kstart'] else (o['wt0'] if extra.get(it) else 1.0) for it in range(14)] + [o['wt14'], o['wt15']]
    cum = [sum(wts[:i+1]) / sum(wts) for i in range(16)]
    take = lambda it: take_n(min(o['maxsl'], n_setup + int(round(cum[it] * rest)) - pos[0]) if it < 15 else len(side))
    OOL = Prog()
    carry = t1[nb0:] + [par_grp]
    for it in range(14):
        sl = take(it)
        spf = []
        for tile in o['sw'].get(it, ()):
            spf.append(L(f"""s_add_u32 {sSB}, {sKR}, {tile}
            s_and_b32 {sSB}, {sSB}, 15
            s_mul_i32 {sSB}, {sSB}, {64*6144}
            s_add_u32 {sSB}, {sSB}, {sSW}"""))
            for r in range(2 if o['swl2'] else 1):
                for sg in range(3): spf.append(L(f"s_load_dwordx2 {sDum}, {pWQ}, {sSB} offset:{r*6144 + sg*2048 + 60}", "spf"))
        for j in o['so_'].get(it, ()): spf.append(L(f"s_load_dwordx2 {sDum}, {pWO}, {sSO} offset:{j*128 + 60}", "spf"))
        k_ = (len(sl) * 2) // 3
        sl = [[x] for x in merge(sl[:k_], spf)] + sl[k_:] if sl[:k_] else spf + sl
        if it < 4: ut_rd(it)
        if it == EC: P(f"buffer_load_dword {vE}, {vEA}, {srdD}, 0 offen sc1")
        tl = dma_tile(it + 2)
        nb = o['nbk'] if it < o['nbuntil'] else 10
        ex = list(extra[it])
        for bt, mk in o['pfe'].get(it, ()): ex.append(pf(bt, mk))
        mains = [list(g) for g in (carry + ex + tl[:nb] if o['exfirst'] else carry + tl[:nb] + ex)]
        if o['hoist']:
            for gi in range(1, len(mains)):
                if mains[gi][0].txt.startswith('s_add_u32 m0'): mains[gi-1].append(mains[gi].pop(0))
        P.extend(merge(mains, sl))
        carry = tl[nb:]
        if it == EA:
            P(f"""s_cmp_eq_u32 {sLW}, 0
            s_cselect_b32 {srdD[2]}, 256, 0
            s_cselect_b32 {sWant}, 64, 0
            s_mov_b64 {srdD.sub(0,2)}, {pDBG}
            s_mov_b32 {srdD[3]}, 0x20000
            s_and_b32 {sBase}, s2, 3
            s_lshl_b32 {sBase}, {sBase}, 6
            s_mov_b64 exec, 1
            buffer_atomic_add {vOne}, {vZero}, {srdD}, {sBase} offen sc1
            s_mov_b64 exec, -1""")
        if it == EC:
            P(f"v_cmp_gt_u32 vcc, {sWant}, {vE}\ns_cbranch_vccnz L_eslow\nL_eback:")
            OOL("L_eslow:"); poll_global(OOL, vEA, vE, 64, srdD, 'gt', sleep=32); OOL("s_branch L_eback")
        if it == EA - 1: P('@waitvm uts')
        trace(3*it + 1)
        P(f"@waitvm t{it+1}")
        trace(3*it + 2)
        P("s_barrier")
        trace(3*it + 3)
    stamp(P, 2)
    P.extend(flat(carry))
    srd(P, srdWO, pWO, 2*MB)
    P(f"s_lshl_b32 {sM0A}, {sLW}, 11")
    def dma_wo(j):
        return [L(f"""s_add_u32 m0, {sM0A}, {wo_addr(j)}
        s_add_u32 {sBase}, {sRot}, {j}
        s_and_b32 {sBase}, {sBase}, 15
        s_lshl_b32 {sBase}, {sBase}, 17
        buffer_load_dwordx4 {vWO}, {srdWO}, {sBase} offen lds""", "wo"),
        L(f"""s_add_u32 {sBase}, {sBase}, {16384 - 1024}
        buffer_load_dwordx4 {vWO}, {srdWO}, {sBase} offen offset:1024 lds""", "wo")]
    d = []
    for i in range(4):
        d.append(L((f"s_add_u32 m0, {sUB}, 512\n" if i == 0 else "") + f"s_mov_b32 {sBase}, {UT + 3072*i}\nbuffer_load_dwordx4 {vUD}, {srdWS}, {sBase} offen offset:{1024*i} sc1 lds", "uT"))
    P.extend(merge(d + [g for j in range(0, o['n14']) for g in dma_wo(j)], take(14)))
    P("@waitvm t15\ns_barrier")
    z4 = bx[0]
    P.extend(merge([g for j in range(o['n14'], o['n14'] + o['n15']) for g in dma_wo(j)], take(15)))
    assert pos[0] >= len(side)
    ldsspin(P, vZero, T15, vE, 4, 1)
    stamp(P, 3)
    V.reset(tmark)
    kacc = V(16); e0, e1 = V(4), V(4); ta, tb_, one = V(), V(), V()
    sK = sSB
    P(f"s_sub_u32 m0, {sKB}, 16384\nv_mov_b32 {one}, 0x3f80")
    for r in range(4): P(f"v_mov_b32 {e1[r]}, 0")
    def fw(st_): return [L(f"ds_write_addtid_b32 {one} offset:16384")] + [L(f"ds_write_addtid_b32 {FV[st_][j]} offset:{16384 + j*272}") for j in range(1, 32)]
    def ew(st_): return [L(f"ds_write_addtid_b32 {EV[st_][h]} offset:{16384 + row*272}") for h in his for row in rows[h]]
    def rd(dst): return [L(f"ds_read_b128 {dst.sub(4*ks,4)}, {vKR} offset:{32*ks}") for ks in range(8)]
    base0 = FV[0][1].idx + (FV[0][1].idx & 1)
    assert FV[1][1].idx == FV[0][31].idx + 1
    eA = R('v', vSpare.idx, 32)
    assert eA.idx % 2 == 0 and eA.idx + 32 <= FV[1][1].idx
    fB = R('v', FV[1][1].idx + (FV[1][1].idx & 1), 32)
    assert fB.idx + 32 <= EV[1][0].idx
    mm = lambda e, f, first: [L(f"v_mfma_f32_32x32x16_bf16 {kacc}, {e.sub(4*ks,4)}, {f.sub(4*ks,4)}, {0 if (first and ks == 0) else kacc}") for ks in range(8)]
    P.extend(flat(fw(0) + rd(fA) + ew(0) + rd(eA)))
    w1 = fw(1)
    P.extend(flat(w1[:8]))
    P.extend(merge(mm(eA, fA, True), w1[8:]))
    P.extend(flat(rd(fB) + ew(1) + rd(eA)))
    P(f"v_lshl_add_u32 {ta}, {vL}, 4, {sKB}")
    zw = [L(f"ds_write_b128 {ta}, {e1} offset:{1024*i}") for i in range(4)]
    P.extend(merge(mm(eA, fB, False), zw))
    k = kacc
    stamp(P, 4)
    P(f"""v_cmp_eq_u32 vcc, 0, {vL}
    v_cndmask_b32 {ta}, 0, {vDsk}, vcc
    v_lshl_add_u32 {tb_}, {vL}, 1, {sKB}
    v_add_f32 {k[0]}, {k[0]}, {ta}""")
    for d in range(4): P(f"v_cvt_pk_bf16_f32 {e0[d]}, {k[7-2*d]}, {k[6-2*d]}")
    P(f"ds_write_b128 {vKX}, {e0}")
    for d in range(4): P(f"v_cvt_pk_bf16_f32 {e1[d]}, {k[8-2*d]}, {k[7-2*d]}")
    P(f"""ds_write_b128 {vKX}, {e1} offset:{R1O}
    v_cvt_pk_bf16_f32 {e0[0]}, {vZero}, {k[8]}
    v_cvt_pk_bf16_f32 {e0[1]}, {k[8]}, {k[8]}
    v_cvt_pk_bf16_f32 {e0[2]}, {k[0]}, {vZero}
    v_cvt_pk_bf16_f32 {e0[3]}, {k[9]}, {k[10]}
    v_cvt_pk_bf16_f32 {e1[0]}, {k[11]}, {k[12]}
    v_cvt_pk_bf16_f32 {e1[1]}, {k[10]}, {k[10]}
    v_mov_b32 {ta}, {sKB}
    ds_write_addtid_b32 {e0[3]} offset:{16384 + S2O + 128}
    ds_write_b16 {tb_}, {e1[0]} offset:{S3O + 64}
    ds_write_b16_d16_hi {tb_}, {e1[0]} offset:{S3O + 64 + 128}
    s_mov_b64 exec, 1
    ds_write_b32 {ta}, {e0[2]} offset:{R1O + 4*272}
    s_mov_b32 {sEx[0]}, 0
    s_mov_b32 {sEx[1]}, 0x80000000
    s_mov_b64 exec, {sEx}
    ds_write_b64 {ta}, {e0.sub(0,2)} offset:56
    ds_write_b32 {ta}, {e0[1]} offset:{R1O + 60}
    s_mov_b64 exec, -1
    v_readlane_b32 {sK}, {e1[1]}, 63""")
    V.reset(kmark)
    TF = [V(4) for _ in range(17)]
    A2 = {d: V(8) for d in (2, 3, 4)}; A3 = {d: V(4) for d in (4, 5, 6, 7)}
    cacc = [V(4) for _ in range(8)]
    wacc = [V(4) for _ in range(6)]
    wop = [V(4) for _ in range(3)]
    NR = (256 - V.next) // 4
    uring = [V(4) for _ in range(NR)]
    def tread(s_):
        off = 16*(16 - s_); ad = vTA[0]
        if off >= 128: off -= 128; ad = vTA[1]
        return [f"ds_read2_b32 {TF[s_].sub(0,2)}, {ad} offset0:{off} offset1:{off+1}", f"ds_read2_b32 {TF[s_].sub(2,2)}, {ad} offset0:{off+2} offset1:{off+3}"]
    a2r = [f"ds_read_b64 {A2[d].sub(2*q,2)}, {vTA[2]} offset:{128*(d-2) + 8*q}" for d in (2, 3, 4) for q in range(4)]
    a3r = [f"ds_read2_b32 {A3[d].sub(2*q,2)}, {vTA[3]} offset0:{16*(d-4) + 2*q} offset1:{16*(d-4) + 2*q + 1}" for d in (4, 5, 6, 7) for q in range(2)]
    first_t = tread(0) + tread(8) + tread(16)
    later_t = tread(1) + tread(9) + a2r + a3r + [x for c in range(2, 8) for x in tread(c) + tread(c + 8)]
    for r in range(4): P(f"v_and_b32 {bx[4][r]}, {sK}, {bx[4][r]}")
    stamp(P, 5)
    uo = lambda c, b: 448 - 64*c + 512*b
    seen = set()
    def acc_mf(a_, A_, B_):
        c_ = cacc[a_] if a_ in seen else 0; seen.add(a_)
        return f"{MF} {cacc[a_]}, {A_}, {B_}, {c_}"
    items = []
    def dense(c, b):
        for i in range(3 if c == 0 else 2):
            if b + i <= 7: items.append((acc_mf(b + i, TF[c + 8*i], "{u}"), uo(c, b)))
    for b in range(8):
        dense(0, b)
        if b <= 3: items.append((acc_mf(b + 4, bx[4], "{u}"), uo(0, b)))
        cv = []
        if b <= 5:
            items.append((f"{MF} {wacc[0]}, {{u}}, {bx[0]}, 0", uo(0, b)))
            items.append((f"{MF} {wacc[1]}, {{u}}, {bx[1]}, 0", uo(0, b)))
            if b <= 3: items.append((f"{MF} {wacc[4]}, {{u}}, {bx[2]}, 0", uo(0, b)))
            items.append((f"{MF} {wacc[2]}, {{u}}, {bx[0]}, 0", uo(0, b) - 16))
            items.append((f"{MF} {wacc[3]}, {{u}}, {bx[1]}, 0", uo(0, b) - 16))
            if b <= 3: items.append((f"{MF} {wacc[5]}, {{u}}, {bx[3]}, 0", uo(0, b) - 16))
            for s_ in range(2):
                for jj in range(2):
                    j = 3 - 2*s_ - jj
                    cv.append(f"v_cvt_pk_bf16_f32 {wop[s_][2*jj]}, {wacc[0][j]}, {wacc[1][j]}")
            for s_ in range(2):
                for jj in range(2):
                    j = 3 - 2*s_ - jj
                    cv.append(f"v_cvt_pk_bf16_f32 {wop[s_][2*jj+1]}, {wacc[2][j]}, {wacc[3][j]}")
            if b <= 3:
                for q in range(4): cv.append(f"v_cvt_pk_bf16_f32 {wop[2][q]}, {wacc[4][3-q]}, {wacc[5][3-q]}")
        if b < 7:
            n0 = len(items)
            for bb in range(8): dense(b + 1, bb)
            fill = items[n0:]; del items[n0:]
            for i, it_ in enumerate(fill):
                items.append(it_)
                if i >= 2 and cv: items.append((cv.pop(0), None))
            assert not cv
        if b <= 5:
            for d in (2, 3, 4):
                if b + d <= 7:
                    for s_ in range(2): items.append((acc_mf(b + d, wop[s_], A2[d].sub(4*s_, 4)), None))
            for d in (4, 5, 6, 7):
                if b + d <= 7: items.append((acc_mf(b + d, wop[2], A3[d]), None))
    assert sum(1 for t, _ in items if t.startswith(MF)) == 202
    keys = []
    for t, kk in items:
        if kk is not None and (not keys or keys[-1] != kk): keys.append(kk)
    assert len(set(keys)) == len(keys)
    slot = {kk: uring[i % NR] for i, kk in enumerate(keys)}
    last = {kk: max(i for i, (t, k2) in enumerate(items) if k2 == kk) for kk in keys}
    P("@waitvm uT")
    for kk in keys[:2]: P(f"ds_read_b128 {slot[kk]}, {vU} offset:{kk}")
    for x in first_t: P(x)
    for kk in keys[2:NR]: P(f"ds_read_b128 {slot[kk]}, {vU} offset:{kk}")
    late = [g for j in range(o['n14'] + o['n15'], 11) for g in dma_wo(j)]
    for i in range(10):
        late.append(L(f"""s_add_u32 m0, {sKB}, {i*1024}
        s_add_u32 {sBase}, {sM0B}, {i*16384}
        s_and_b32 {sBase}, {sBase}, 0x1fffff
        buffer_load_dwordx4 {vWO2}, {srdWO}, {sBase} offen lds""", "wo"))
    if o.get('nolate'): late = []
    P(f"""s_add_u32 {sM0B}, {sRot}, 11
    s_lshl_b32 {sM0B}, {sM0B}, 17
    s_mul_i32 {sT}, {sLW}, {80*2048}
    s_add_u32 {sM0B}, {sM0B}, {sT}""")
    if o['gate']:
        for x in later_t: P(x)
        later_t = []
        P(f"@waitvm wo\nds_write_b32 {vLF}, {vOne}\n@waitlg")
        if o['gate'] == 2:
            for g in late: P.extend(g)
            late = []
        ldsspin(P, vLF, GATE - LF, vE, o['gatev'], 1)
    stamp(P, 6)
    nxt = NR; nm = 0; tdone = 0 if o['gate'] else None
    for i, (t, kk) in enumerate(items):
        P(t.replace("{u}", str(slot[kk])) if kk is not None else t)
        issued = False
        if kk is not None and last[kk] == i and nxt < len(keys):
            P(f"ds_read_b128 {slot[keys[nxt]]}, {vU} offset:{keys[nxt]}"); nxt += 1; issued = True
        if t.startswith(MF):
            nm += 1
            for _ in range(2 if nm <= 12 else 1):
                if later_t:
                    P(later_t.pop(0))
                    if not later_t: tdone = nm
            if nm == o['lf1'] and not o['gate']: P(f"@waitvm wo\nds_write_b32 {vLF}, {vOne}")
            if nm >= o['late0'] and (nm - o['late0']) % o['latestep'] == 0 and late:
                if len(late) == 10:
                    assert tdone is not None and nm > tdone
                    P(f"v_mov_b32 {vT}, {TF[15][3]}")
                P.extend(late.pop(0))
    stamp(P, 7)
    if late: P('@waitlg')
    for g in late: P.extend(g)
    P(f"""v_and_b32 {vT}, 15, {vL}
    v_lshlrev_b32 {vT}, 4, {vT}
    v_bfe_u32 {vT2}, {vL}, 4, 1
    v_lshl_add_u32 {vT}, {vT2}, 9, {vT}
    v_lshrrev_b32 {vT2}, 5, {vL}
    v_lshl_add_u32 {vT}, {vT2}, 8, {vT}
    s_lshl_b32 {sT}, {sCH}, 12
    s_add_u32 {sT}, {sT}, {AT}""")
    for Pi in range(4):
        d = TF[Pi]; a0, a1 = cacc[2*Pi], cacc[2*Pi+1]
        P(f"""v_cvt_pk_bf16_f32 {d[0]}, {a0[0]}, {a0[1]}
        v_cvt_pk_bf16_f32 {d[1]}, {a0[2]}, {a0[3]}
        v_cvt_pk_bf16_f32 {d[2]}, {a1[0]}, {a1[1]}
        v_cvt_pk_bf16_f32 {d[3]}, {a1[2]}, {a1[3]}
        v_permlane16_swap_b32 {d[0]}, {d[2]}
        v_permlane16_swap_b32 {d[1]}, {d[3]}
        """)
    for Pi in range(4):
        if not o.get('noat'): P(f"buffer_store_dwordx4 {TF[Pi]}, {vT}, {srdWS}, {sT} offen offset:{1024*Pi} sc1")
    P(f"""v_mov_b32 {vT2}, 2
    @waitvm wo
    ds_write_b32 {vLF}, {vT2}""")
    stamp(P, 8)
    P(f"""s_lshr_b32 {sT2}, {sCH}, 6
    s_lshl_b32 {sT2}, {sT2}, 4
    v_add_u32 {vT}, {sT2}, {vL}
    v_mul_u32_u24 {vT}, {FS}, {vT}
    v_add_u32 {vT}, {F3}, {vT}
    v_lshrrev_b32 {vT2}, 4, {vL}
    v_lshlrev_b32 {vAT[0]}, 12, {vT2}
    v_and_b32 {vAT[1]}, 7, {vL}
    v_xor_b32 {vT2}, {vT2}, {vAT[1]}
    v_lshl_add_u32 {vAT[0]}, {vT2}, 4, {vAT[0]}
    v_bfe_u32 {vT2}, {vL}, 3, 1
    v_lshl_add_u32 {vAT[0]}, {vT2}, 8, {vAT[0]}
    s_lshl_b32 {sT}, {sCT}, 18
    s_lshr_b32 {sT2}, {sMT2}, 1
    s_lshl_b32 {sT2}, {sT2}, 9
    s_add_u32 {sT}, {sT}, {sT2}
    s_and_b32 {sT2}, {sMT2}, 1
    s_lshl_b32 {sT2}, {sT2}, 7
    s_add_u32 {sT}, {sT}, {sT2}
    v_add_u32 {vAT[0]}, {sT}, {vAT[0]}
    v_xor_b32 {vAT[1]}, 64, {vAT[0]}
    s_waitcnt vmcnt(0)
    s_mov_b64 exec, 0xffff
    buffer_atomic_add {vOne}, {vT}, {srdWS}, 0 offen sc1
    s_mov_b64 exec, -1""")
    stamp(P, 9)
    if stamps: stamp(P, 10)
    P(f"s_cmp_lg_u32 {sLW}, 0\ns_cbranch_scc1 L_ldone")
    lfr = TF[4]
    P(f"s_sleep {o['pre3']}\ns_mov_b32 {sCnt}, 0")
    P.loop_begin("L_l3")
    P(f"""s_sleep {o['sl3']}
    s_mov_b64 exec, 1
    {atomic_read(vE, vC3)}
    ds_read_b128 {lfr}, {vZero} offset:{LF}
    s_add_u32 {sCnt}, {sCnt}, 1
    s_cmp_gt_u32 {sCnt}, {SPIN_G}
    s_waitcnt vmcnt(0) lgkmcnt(0)
    s_cbranch_scc1 L_l3d
    v_min_u32 {lfr[0]}, {lfr[0]}, {lfr[1]}
    v_min3_u32 {lfr[0]}, {lfr[0]}, {lfr[2]}, {lfr[3]}
    v_lshlrev_b32 {lfr[0]}, 5, {lfr[0]}
    v_min_u32 {lfr[0]}, {lfr[0]}, {vE}
    v_cmp_gt_u32 vcc, 64, {lfr[0]}
    s_cbranch_vccnz L_l3""")
    P.loop_end()
    P("L_l3d:\ns_mov_b64 exec, -1")
    stamp(P, 10)
    for i in range(16):
        if i % 4 == 0: P(f"s_mov_b32 m0, {U0 + USZ*(i>>2) + 512}")
        P(f"s_mov_b32 {sBase}, {AT + 16384*i - 1024*(i&3)}")
        P(f"buffer_load_dwordx4 {vAT[i&1]}, {srdWS}, {sBase} offen offset:{1024*(i&3)} sc1 lds")
    for r in range(4): P(f"v_mov_b32 {lfr[r]}, 3")
    P(f"""s_waitcnt vmcnt(0)
    ds_write_b128 {vZero}, {lfr} offset:{LF}
    s_waitcnt lgkmcnt(0)
    L_ldone:""")
    stamp(P, 11)
    if o.get('trace'):
        P(f"""s_lshl_b32 {sT}, s2, 2
        s_add_u32 {sT}, {sT}, {sLW}
        s_lshl_b32 {sT}, {sT}, 8
        s_add_u32 {sT}, {sT}, {STAMP_OFF + MB}
        v_lshl_add_u32 {vT}, {vL}, 2, {sT}
        buffer_store_dword {vTr}, {vT}, {srdWS}, 0 offen""")
    dump_stamps(P, vT, z4, 1)
    P("s_endpgm")
    loader, vhiL, shiL = P, V.hi, S.hi

    P = Prog()
    S.reset(smark); V = Alloc('v', 1, 256)
    srdOUT = S(4)
    sWM, sWN, sHD, sIt, sStage, sDelta, sBase, sI2, sEps, sL2E, sPst, sGr = [S() for _ in range(12)]
    sRetry = sI2
    sPC = S(2); sExZ = S(2); sExG = S(2); sO = [S(), S()]
    alloc_stamps(14)
    vT, vT2, vOne, vC1, vC2, vA1, vA2 = [V() for _ in range(7)]
    pr = [V(), V()]
    vXS, vXP, vPA, vZS, vZL, vS1W, vS1R, vS3W, vS3R, vS3FW, vS3FR, vOA = [V() for _ in range(12)]
    vOL, vGA, vLFa, vOut = [V() for _ in range(4)]
    vWB = [V() for _ in range(4)]; vAR = [V(), V()]
    selr = V(6); ones = V(4)
    pq = [V(4) for _ in range(4)]
    vGa, vGS = V(), V()
    cmark = V.mark()
    vRA = [V(), V()]; vRB = [V() for _ in range(4)]
    vGx, vGw, gx_, gw_ = V(), V(), V(), V()
    fa = [[V(4) for _ in range(4)] for _ in range(2)]
    fb = [[V(4) for _ in range(6)] for _ in range(2)]
    acc = [[V(4) for _ in range(6)] for _ in range(4)]
    vDum = V()
    P("L_compute:")
    role_now[0] = 'c'
    P(f"""s_lshr_b32 {sWM}, {sW}, 1
    s_and_b32 {sWN}, {sW}, 1
    s_lshl_b32 {sHD}, {sHP}, 1
    s_add_u32 {sHD}, {sHD}, {sWN}
    s_lshl_b32 {sT}, {sMT}, 1
    s_add_u32 {sT}, {sT}, {sWM}
    s_lshl_b32 {sT}, {sT}, 5
    s_add_u32 {sI2}, {sT}, {sHD}""")
    if o['codepf']:
        P(f"""s_getpc_b64 {sPC}
        L_pcref:
        s_sub_u32 {sPC[0]}, {sPC[0]}, L_pcref-{KNAME}
        s_subb_u32 {sPC[1]}, {sPC[1]}, 0
        s_lshr_b32 {sT}, s2, 3
        s_lshl_b32 {sT}, {sT}, 2
        s_add_u32 {sT}, {sT}, {sW}
        s_lshl_b32 {sT}, {sT}, 8
        v_lshl_add_u32 {vT}, {vL}, 2, {sT}
        v_min_u32 {vT}, L_codeend-{KNAME}-4, {vT}
        global_load_dword {vDum}, {vT}, {sPC}""")
    sent = fa[0][0]
    if o['b0']:
        vB0 = fa[1][1][0]; srdB = srdOUT
        P(f"""s_and_b32 {sT}, {sHP}, 3
        s_lshl_b32 {sT2}, {sMT}, 2
        s_add_u32 {sT}, {sT}, {sT2}
        s_and_b32 {sT2}, {sHP}, 12
        s_lshl_b32 {sT3}, {sWN}, 1
        s_add_u32 {sT3}, {sT3}, {sT2}
        s_cmp_eq_u32 {sWM}, 0
        s_cbranch_scc0 L_b0w
        s_lshl_b32 {sT}, {sT}, 16
        s_lshl_b32 {sT3}, {sT3}, 7
        s_add_u32 {sT}, {sT}, {sT3}
        v_lshrrev_b32 {vT}, 1, {vL}
        v_lshl_add_u32 {vB0}, {vT}, 11, {sT}
        v_and_b32 {vT}, 1, {vL}
        v_lshl_add_u32 {vB0}, {vT}, 7, {vB0}
        s_waitcnt lgkmcnt(0)
        s_mov_b64 {srdB.sub(0,2)}, {pX}
        s_branch L_b0go
        L_b0w:
        s_and_b32 {sT}, {sT}, 31
        s_lshl_b32 {sT}, {sT}, 2
        s_lshl_b32 {sT3}, {sT3}, 6
        s_add_u32 {sT}, {sT}, {sT3}
        s_mul_i32 {sT}, {sT}, 6144
        s_lshl_b32 {sT2}, {sT2}, 7
        s_add_u32 {sT}, {sT}, {sT2}
        v_lshrrev_b32 {vT}, 4, {vL}
        v_mul_u32_u24 {vB0}, 6144, {vT}
        v_bfe_u32 {vT}, {vL}, 2, 2
        v_min_u32 {vT}, 2, {vT}
        v_lshl_add_u32 {vB0}, {vT}, 11, {vB0}
        v_and_b32 {vT}, 3, {vL}
        v_lshl_add_u32 {vB0}, {vT}, 7, {vB0}
        v_add_u32 {vB0}, {sT}, {vB0}
        s_waitcnt lgkmcnt(0)
        s_mov_b64 {srdB.sub(0,2)}, {pWQ}
        L_b0go:
        s_mov_b32 {sT}, {o['b0']}
        s_bitcmp1_b32 {sT}, {sW}
        s_cselect_b32 {srdB[2]}, {6*MB}, 0
        s_mov_b32 {srdB[3]}, 0x20000
        s_cmp_eq_u32 {sWN}, 0
        s_cbranch_scc1 L_b0now
        s_sleep {o.get('b0sl', 0)}
        L_b0now:
        buffer_load_dword {fa[1][1][1]}, {vB0}, {srdB}, 0 offen""")
    P(f"""s_lshl_b32 {sT}, {sHD}, 4
    v_add_u32 {vA1}, {sT}, {vL}
    v_mul_u32_u24 {vA1}, {FS}, {vA1}
    v_add_u32 {vA1}, {F1}, {vA1}
    s_add_u32 {sT}, {sT}, {sMT}
    s_mul_i32 {sT}, {sT}, {FS}
    s_add_u32 {sT}, {sT}, {F1}
    v_mov_b32 {vC1}, {sT}
    s_lshl_b32 {sT}, {sMT}, 1
    s_add_u32 {sT}, {sT}, {sWM}
    s_lshl_b32 {sT}, {sT}, 4
    v_add_u32 {vA2}, {sT}, {vL}
    v_mul_u32_u24 {vA2}, {FS}, {vA2}
    v_add_u32 {vA2}, {F2}, {vA2}
    s_lshl_b32 {sT}, {sMT2}, 1
    s_add_u32 {sT}, {sT}, {sWM}
    s_lshl_b32 {sT}, {sT}, 4
    s_add_u32 {sT}, {sT}, {sCT}
    s_mul_i32 {sT}, {sT}, {FS}
    s_add_u32 {sT}, {sT}, {F2}
    v_mov_b32 {vC2}, {sT}
    v_mov_b32 {vOne}, 1
    v_mov_b32 {vT2}, 0
    s_lshl_b32 {sT}, {sHD}, 1
    s_add_u32 {sT}, {sT}, {sWM}
    s_lshl_b32 {sT2}, {sT}, 14
    s_add_u32 {sT2}, {sT2}, {PART}
    v_lshl_add_u32 {vPA}, {vL}, 4, {sT2}
    s_lshl_b32 {sT}, {sT}, 4
    s_add_u32 {sT}, {sT}, {sMT}
    s_lshl_b32 {sT}, {sT}, 6
    s_add_u32 {sT}, {sT}, {ZP}
    v_add_u32 {vZS}, {sT}, {vL}
    s_lshl_b32 {sPst}, {sMT}, 10
    s_lshl_b32 {sT}, {sCT}, 4
    s_add_u32 {sT}, {sT}, {sMT2}
    s_mul_i32 {sT}, {sT}, {FS}
    s_add_u32 {sT}, {sT}, {F3}
    v_mov_b32 {vGa}, {sT}
    s_lshl_b32 {sT}, {sMT}, 4
    s_add_u32 {sT}, {sT}, {sHP}
    s_lshl_b32 {sT}, {sT}, 2
    s_add_u32 {sT}, {sT}, {sW}
    s_lshl_b32 {sT}, {sT}, 3
    s_add_u32 {sT}, {sT}, {GG}
    v_lshrrev_b32 {vT}, 5, {vL}
    v_lshl_add_u32 {vGS}, {vT}, 2, {sT}
    s_mov_b32 {sExZ[0]}, 0x00010001
    s_mov_b32 {sExZ[1]}, 0x00010001
    s_mov_b32 {sExG[0]}, 0x80000000
    s_mov_b32 {sExG[1]}, 0x80000000
    v_mov_b32 {sent[0]}, -1
    v_mov_b32 {sent[1]}, -1
    v_mov_b32 {sent[2]}, -1
    v_mov_b32 {sent[3]}, -1
    s_waitcnt lgkmcnt(0)""")
    pstamp(P, 2)
    srd(P, srdWS, pWS, 0x10000000); srd(P, srdOUT, pOUT, 4*MB)
    P(f"""buffer_store_dwordx4 {sent}, {vPA}, {srdWS}, {sPst} offen sc1
    s_mov_b64 exec, {sExZ}
    buffer_store_dwordx4 {sent}, {vZS}, {srdWS}, 0 offen sc1
    s_mov_b64 exec, 1
    buffer_store_dword {vT2}, {vC1}, {srdWS}, 0 offen sc1
    buffer_store_dword {vT2}, {vC2}, {srdWS}, 0 offen sc1
    buffer_store_dword {vT2}, {vGa}, {srdWS}, 0 offen sc1
    s_mov_b64 exec, {sExG}
    buffer_store_dword {sent[0]}, {vGS}, {srdWS}, 0 offen sc1
    s_mov_b64 exec, -1""")
    P(f"""s_lshl_b32 {sT}, {sW}, 9
    s_add_u32 m0, {sT}, {GWL}
    s_lshr_b32 {sT2}, {sHP}, 2
    s_add_u32 {sT2}, {sT2}, {sW}
    s_and_b32 {sT2}, {sT2}, 3
    s_lshl_b32 {sT2}, {sT2}, 9
    v_lshl_add_u32 {vT}, {vL}, 4, {sT2}
    s_mov_b64 exec, 0xffffffff
    global_load_lds_dwordx4 {vT}, {pGW}
    s_mov_b64 exec, -1""")
    if o['spro']:
        P(f"""s_and_b32 {sT}, {sHP}, 3
        s_lshl_b32 {sT2}, {sMT}, 2
        s_add_u32 {sT}, {sT}, {sT2}
        s_and_b32 {sT3}, {sHP}, 12
        s_lshl_b32 {sO[0]}, {sT}, 2
        s_add_u32 {sO[0]}, {sO[0]}, {sW}
        s_lshl_b32 {sO[0]}, {sO[0]}, 14
        s_lshl_b32 {sT2}, {sT3}, 7
        s_add_u32 {sO[0]}, {sO[0]}, {sT2}
        s_lshl_b32 {sO[1]}, {sT3}, 6
        s_add_u32 {sO[1]}, {sO[1]}, {sT}
        s_mul_i32 {sO[1]}, {sO[1]}, 6144
        s_add_u32 {sO[1]}, {sO[1]}, {sT2}
        s_lshl_b32 {sT2}, {sW}, 7
        s_add_u32 {sO[1]}, {sO[1]}, {sT2}""")
        for tile in o['spro']:
            for r in range(8): P(f"s_load_dwordx2 {sPC}, {pX}, {sO[0]} offset:{r*2048 + tile*128 + 60}", "spf")
            P(f"s_add_u32 {sT}, {sO[1]}, {tile*64*6144}")
            for sg in range(3): P(f"s_load_dwordx2 {sPC}, {pWQ}, {sT} offset:{sg*2048 + 60}", "spf")
    P(f"""s_lshl_b32 {sT}, {sWM}, 13
    s_add_u32 {sT}, {sT}, {ST0}
    v_and_b32 {vT}, 15, {vL}
    v_lshl_add_u32 {vRA[0]}, {vT}, 7, {sT}
    v_bfe_u32 {vT}, {vL}, 1, 3
    v_lshrrev_b32 {vT2}, 4, {vL}
    v_xor_b32 {vT}, {vT}, {vT2}
    v_lshl_add_u32 {vRA[0]}, {vT}, 4, {vRA[0]}
    v_xor_b32 {vRA[1]}, 64, {vRA[0]}
    v_lshlrev_b32 {vRB[0]}, 10, {vT2}
    v_bfe_u32 {vT}, {vL}, 2, 2
    v_lshl_add_u32 {vRB[0]}, {vT}, 7, {vRB[0]}
    s_lshl_b32 {sT}, {sWN}, 1
    v_bfe_u32 {vT}, {vL}, 3, 2
    v_xor_b32 {vT}, {sT}, {vT}
    v_lshl_add_u32 {vRB[0]}, {vT}, 5, {vRB[0]}
    v_and_b32 {vT}, 3, {vL}
    v_lshl_add_u32 {vRB[0]}, {vT}, 3, {vRB[0]}
    v_add_u32 {vRB[0]}, {ST0 + ASZ}, {vRB[0]}
    v_xor_b32 {vRB[1]}, 32, {vRB[0]}
    s_lshl_b32 {sT}, {sWM}, 5
    v_xor_b32 {vRB[2]}, {sT}, {vRB[0]}
    v_xor_b32 {vRB[3]}, 32, {vRB[2]}
    s_lshl_b32 {sT}, {sHP}, 2
    s_add_u32 {sT}, {sT}, {sW}
    s_and_b32 {sT2}, {sT}, 7
    s_lshl_b32 {sT}, {sT}, 8
    s_add_u32 {sT}, {sT}, {ST0}
    v_lshrrev_b32 {vT}, 5, {vL}
    v_lshl_add_u32 {vGx}, {vT}, 7, {sT}
    v_bfe_u32 {vT}, {vL}, 2, 3
    v_xor_b32 {vT}, {sT2}, {vT}
    v_lshl_add_u32 {vGx}, {vT}, 4, {vGx}
    v_and_b32 {vT}, 3, {vL}
    v_lshl_add_u32 {vGx}, {vT}, 2, {vGx}
    v_and_b32 {vT}, 31, {vL}
    v_lshlrev_b32 {vGw}, 2, {vT}
    v_mov_b32 {vGa}, 0
    s_mov_b32 {sIt}, 0
    s_mov_b32 {sStage}, 0""")
    for row in acc:
        for t in row:
            for r in range(4): P(f"v_mov_b32 {t[r]}, 0")
    c1, c2 = fa[1][0][0], fa[1][0][1]
    P(f"""s_mov_b32 {sEps}, 0x358637bd
    s_mov_b32 {sL2E}, {LOG2E}
    s_and_b32 {sGr}, {sMT}, {7 if o['grot'] else 0}
    s_lshl_b32 {sGr}, {sGr}, 11
    s_lshl_b32 {sT}, {sW}, 11
    s_add_u32 {sT}, {sT}, {XS0}
    v_lshl_add_u32 {vXS}, {vL}, 4, {sT}
    s_xor_b32 {sT}, {sW}, 2
    s_lshl_b32 {sT}, {sT}, 11
    s_add_u32 {sT}, {sT}, {XS0}
    v_lshl_add_u32 {vXP}, {vL}, 4, {sT}
    s_lshl_b32 {sT}, {sW}, 2
    s_add_u32 {sT2}, {sT}, {S1F}
    v_mov_b32 {vS1W}, {sT2}
    v_xor_b32 {vS1R}, 8, {vS1W}
    s_add_u32 {sT2}, {sT}, {S3F}
    v_mov_b32 {vS3FW}, {sT2}
    v_xor_b32 {vS3FR}, 8, {vS3FW}
    s_lshl_b32 {sT}, {sW}, 10
    s_add_u32 {sT}, {sT}, {S3B}
    v_lshl_add_u32 {vS3W}, {vL}, 4, {sT}
    s_lshl_b32 {sT}, {sWN}, 10
    s_add_u32 {sT}, {sT}, {S3B}
    v_lshl_add_u32 {vS3R}, {vL}, 4, {sT}
    s_lshl_b32 {sT}, {sHD}, 11
    s_add_u32 {sT}, {sT}, {ZP}
    v_and_b32 {vT}, 15, {vL}
    v_lshl_add_u32 {vZL}, {vT}, 6, {sT}
    v_lshrrev_b32 {vT2}, 4, {vL}
    v_lshl_add_u32 {vZL}, {vT2}, 4, {vZL}
    v_lshlrev_b32 {vT2}, 2, {vT2}
    v_sub_u32 {vT}, {vT}, {vT2}
    v_mov_b32 {selr[0]}, 0
    v_mov_b32 {selr[1]}, 0
    v_mov_b32 {selr[4]}, 0
    v_mov_b32 {selr[5]}, 0
    v_mov_b32 {c1}, 0x3f80
    v_mov_b32 {c2}, 0x3f800000
    v_cmp_eq_u32 vcc, 0, {vT}
    v_cndmask_b32 {selr[2]}, 0, {c1}, vcc
    v_cmp_eq_u32 vcc, 1, {vT}
    v_cndmask_b32 {selr[2]}, {selr[2]}, {c2}, vcc
    v_cmp_eq_u32 vcc, 2, {vT}
    v_cndmask_b32 {selr[3]}, 0, {c1}, vcc
    v_cmp_eq_u32 vcc, 3, {vT}
    v_cndmask_b32 {selr[3]}, {selr[3]}, {c2}, vcc
    v_mov_b32 {ones[0]}, 0x3f803f80
    v_mov_b32 {ones[1]}, 0x3f803f80
    v_mov_b32 {ones[2]}, 0x3f803f80
    v_mov_b32 {ones[3]}, 0x3f803f80
    s_lshl_b32 {sT}, {sMT}, 1
    s_add_u32 {sT}, {sT}, {sWM}
    s_lshl_b32 {sT}, {sT}, 7
    s_add_u32 {sT}, {sT}, {sHD}
    s_lshl_b32 {sT}, {sT}, 10
    s_add_u32 {sT}, {sT}, {OF}
    v_lshl_add_u32 {vOA}, {vL}, 4, {sT}
    v_lshrrev_b32 {vT}, 2, {vL}
    v_lshlrev_b32 {vWB[0]}, 7, {vT}
    v_bfe_u32 {vT}, {vL}, 3, 2
    v_lshl_add_u32 {vWB[0]}, {vT}, 5, {vWB[0]}
    v_and_b32 {vT}, 3, {vL}
    v_lshl_add_u32 {vWB[0]}, {vT}, 3, {vWB[0]}
    v_add_u32 {vWB[0]}, {wo_addr(0)}, {vWB[0]}
    v_xor_b32 {vWB[1]}, 32, {vWB[0]}
    v_xor_b32 {vWB[2]}, 64, {vWB[0]}
    v_xor_b32 {vWB[3]}, 96, {vWB[0]}
    s_lshl_b32 {sT}, {sMT2}, 2
    s_add_u32 {sT}, {sT}, {sW}
    s_lshl_b32 {sT2}, {sT}, 16
    s_add_u32 {sT3}, {sT2}, {OF}
    v_lshl_add_u32 {vOL}, {vL}, 4, {sT3}
    s_lshl_b32 {sT3}, {sCT}, 7
    s_add_u32 {sT2}, {sT2}, {sT3}
    v_and_b32 {vT}, 15, {vL}
    v_lshl_add_u32 {vOut}, {vT}, 11, {sT2}
    v_bfe_u32 {vT2}, {vL}, 4, 1
    v_lshl_add_u32 {vOut}, {vT2}, 5, {vOut}
    v_lshrrev_b32 {vT2}, 5, {vL}
    v_lshl_add_u32 {vOut}, {vT2}, 4, {vOut}
    s_lshl_b32 {sT2}, {sT}, 7
    s_add_u32 {sT2}, {sT2}, {GG}
    v_lshl_add_u32 {vGA}, {vT}, 2, {sT2}
    v_mov_b32 {vLFa}, {LF}
    v_lshrrev_b32 {vT}, 2, {vL}
    v_lshlrev_b32 {vAR[0]}, 8, {vT}
    v_and_b32 {vT}, 7, {vT}
    s_lshl_b32 {sT}, {sW}, 1
    v_xor_b32 {vT}, {sT}, {vT}
    v_lshl_add_u32 {vAR[0]}, {vT}, 4, {vAR[0]}
    v_bfe_u32 {vT}, {vL}, 1, 1
    v_lshl_add_u32 {vAR[0]}, {vT}, 7, {vAR[0]}
    v_and_b32 {vT}, 1, {vL}
    v_lshl_add_u32 {vAR[0]}, {vT}, 3, {vAR[0]}
    v_add_u32 {vAR[0]}, {U0 + 512}, {vAR[0]}
    v_xor_b32 {vAR[1]}, 16, {vAR[0]}
    s_lshl_b32 {sRot}, {sRot}, 11""")
    pstamp(P, 3); pstamp(P, 4)
    P("s_waitcnt vmcnt(0)")
    pstamp(P, 5)
    P("s_barrier")
    def reads(ks, buf):
        ra = [L(f"ds_read_b128 {fa[buf][mi]}, {vRA[ks]} offset:{mi*2048}") for mi in range(4)]
        rb = []
        for ni in range(6):
            ad = vRB[(ni & 1) + (2 if ni >= 4 else 0)]
            for t in range(2):
                rb.append(L(f"ds_read_b64_tr_b16 {fb[buf][ni].sub(2*t,2)}, {ad} offset:{(ni>>1)*8192 + ks*4096 + t*512}"))
        return ra[:1] + rb + ra[1:]
    def mf1(buf, mi, ni):
        a_, b_ = (fb[buf][ni], fa[buf][mi]) if ni < 2 else (fa[buf][mi], fb[buf][ni])
        return L(f"{MF} {acc[mi][ni]}, {a_}, {b_}, {acc[mi][ni]}")
    def mfmas(buf, nis=range(6)):
        nis = list(nis)
        return [mf1(buf, mi, ni) for mi in range(4) for ni in (nis if mi % 2 == 0 else nis[::-1])]
    for g in reads(0, 0): P.extend(g)
    stamp(P, 1)
    if stamps and not o.get('pad'): P(f"s_memtime {st[12]}")
    P("s_waitcnt lgkmcnt(0)")
    P.loop_begin("L_gemm")
    m0_, m1_ = mfmas(0), mfmas(1)
    adv = L(f"""s_add_u32 {sStage}, {sStage}, 1
    s_mov_b32 {sDelta}, {SSZ}
    s_cmp_eq_u32 {sStage}, 3
    s_cselect_b32 {sDelta}, {(-2*SSZ) & 0xffffffff}, {sDelta}
    s_cselect_b32 {sStage}, 0, {sStage}""")
    adv2 = [L(f"v_add_u32 {r}, {sDelta}, {r}") for r in vRA + vRB]
    grd = lambda: one_by_one(f"ds_read_b32 {gx_}, {vGx}\nds_read_b32 {gw_}, {vGw} offset:{GWL}")
    gva = lambda: one_by_one(f"""v_lshlrev_b32 {vT}, 16, {gx_}
    v_lshlrev_b32 {vT2}, 16, {gw_}
    v_and_b32 {gx_}, 0xffff0000, {gx_}
    v_and_b32 {gw_}, 0xffff0000, {gw_}
    v_fmac_f32 {vGa}, {vT}, {vT2}
    v_fmac_f32 {vGa}, {gx_}, {gw_}""")
    P.extend(merge(m0_[:16], reads(1, 1)))
    P.extend(merge(m0_[16:18], grd()))
    P.extend(merge(m0_[18:20], [[x] for x in adv]))
    P.extend(merge(m0_[20:], adv2))
    P("s_waitcnt lgkmcnt(0)")
    P.extend(merge(m1_[:2], one_by_one(f"v_add_u32 {vGx}, {sDelta}, {vGx}\nv_add_u32 {vGw}, 128, {vGw}")))
    P("s_barrier")
    P.extend(merge(m1_[2:18], reads(0, 0)))
    P.extend(merge(m1_[18:], gva() + [L(f"s_add_u32 {sIt}, {sIt}, 1"), L(f"s_cmp_lt_u32 {sIt}, 15")]))
    P("s_waitcnt lgkmcnt(0)\ns_cbranch_scc1 L_gemm")
    P.loop_end()
    P.extend(merge(mfmas(0, range(2, 6)), reads(1, 1) + grd()))
    P(f"s_mov_b64 exec, 1\nds_add_u32 {vLFa}, {vOne} offset:{T15 - LF}\ns_mov_b64 exec, -1")
    P.extend(flat(mfmas(1, range(2, 6))[:8]) + merge(mfmas(1, range(2, 6))[8:], gva()))
    stamp(P, 2)
    if stamps and not o.get('pad'): P(f"s_memtime {st[13]}")
    if o['prio']: P(f"s_setprio {o['prio']}")
    tmp = [V() for _ in range(8)]
    pkf = [fb[0][2], fb[0][3]]; vf = [fb[0][4], fb[0][5]]
    kvt = [[pq[0], pq[1]], [pq[2], pq[3]]]; zt = [fb[1][2], fb[1][3]]
    def phi(tile, dst2):
        t0 = tmp[0:4]; t1 = tmp[4:8]
        for j in range(4): P(f"v_mul_f32 {t0[j]}, {sL2E}, {tile[j]}")
        for j in range(4): P(f"v_exp_f32_e64 {t0[j]}, {t0[j]} clamp\nv_max_f32 {t1[j]}, {sEps}, {tile[j]}")
        for j in range(4): P(f"v_add_f32 {t0[j]}, {t0[j]}, {t1[j]}")
        P(f"v_cvt_pk_bf16_f32 {dst2[0]}, {t0[0]}, {t0[1]}\nv_cvt_pk_bf16_f32 {dst2[1]}, {t0[2]}, {t0[3]}")
    for p in range(2):
        for d in range(2):
            for h in range(2): phi(acc[2*p+h][2+d], pkf[d].sub(2*h, 2))
            if d == 0:
                for e in range(2):
                    for h in range(2):
                        t = acc[2*p+h][4+e]
                        P(f"v_cvt_pk_bf16_f32 {vf[e][2*h]}, {t[0]}, {t[1]}\nv_cvt_pk_bf16_f32 {vf[e][2*h+1]}, {t[2]}, {t[3]}")
            for e in (1, 0): P(f"{MF} {kvt[d][e]}, {pkf[d]}, {vf[e]}, {kvt[d][e] if p else 0}")
            P(f"{MF} {zt[d]}, {pkf[d]}, {ones}, {zt[d] if p else 0}")
            if p == 1 and d == 1: P(f"ds_write_b128 {vXS}, {kvt[0][1]}")
    zf = fb[1][4]; pf = fb[1][5]
    qm = mfmas(0, range(2)) + mfmas(1, range(2))
    P.extend(flat(qm[:4]))
    P(f"""ds_write_b128 {vXS}, {kvt[1][1]} offset:1024
    ds_write_b32 {vS1W}, {vOne}
    v_cvt_pk_bf16_f32 {zf[0]}, {zt[0][0]}, {zt[0][1]}
    v_cvt_pk_bf16_f32 {zf[1]}, {zt[0][2]}, {zt[0][3]}
    v_cvt_pk_bf16_f32 {zf[2]}, {zt[1][0]}, {zt[1][1]}
    v_cvt_pk_bf16_f32 {zf[3]}, {zt[1][2]}, {zt[1][3]}""")
    def lds_pair_wait(vflag, d0, d1, vaddr, off1):
        l0, l1 = lab("pw"), lab("pwd")
        P(f"s_mov_b32 {sCnt}, 0")
        P.loop_begin(l0)
        P(f"""ds_read_b32 {vT}, {vflag}
        ds_read_b128 {d0}, {vaddr}
        ds_read_b128 {d1}, {vaddr} offset:{off1}
        s_add_u32 {sCnt}, {sCnt}, 1
        s_cmp_gt_u32 {sCnt}, {SPIN_L}
        s_waitcnt lgkmcnt(0)
        s_cbranch_scc1 {l1}
        v_cmp_ne_u32 vcc, 1, {vT}
        s_cbranch_vccnz {l0}""")
        P.loop_end()
        P(f"{l1}:")
    lds_pair_wait(vS1R, kvt[0][1], kvt[1][1], vXP, 1024)
    for d in range(2):
        for j in range(4): P(f"v_add_f32 {kvt[d][0][j]}, {kvt[d][0][j]}, {kvt[d][1][j]}")
        P(f"v_cvt_pk_bf16_f32 {pf[2*d]}, {kvt[d][0][0]}, {kvt[d][0][1]}\nv_cvt_pk_bf16_f32 {pf[2*d+1]}, {kvt[d][0][2]}, {kvt[d][0][3]}")
    P(f"""buffer_store_dwordx4 {pf}, {vPA}, {srdWS}, {sPst} offen sc1
    s_mov_b64 exec, {sExZ}
    buffer_store_dwordx4 {zf}, {vZS}, {srdWS}, 0 offen sc1
    s_mov_b64 exec, 0xffff
    buffer_atomic_add {vOne}, {vA1}, {srdWS}, 0 offen sc1
    s_mov_b64 exec, -1""")
    stamp(P, 3)
    P.extend(flat(qm[4:4 + o['p1at']]))
    P(f"s_mov_b64 exec, 1\n{atomic_read(pr[0], vC1)}\ns_mov_b64 exec, -1")
    P.extend(flat(qm[4 + o['p1at']:]))
    F0 = fa[0][0].idx
    parts = [R('v', F0 + 4*i, 4) for i in range(16)]
    zl = [acc[2][5], acc[3][5]]
    zs = R('v', acc[0][2].idx, 8)
    zb = acc[1][2]; sm = [acc[1][3], acc[2][2]]; kf = [acc[2][3], acc[3][2]]; pf = acc[3][3]
    den = [R('v', F0 + 64 + 4*i, 4) for i in range(4)]
    qphi = [(tt, d) for tt in range(4) for d in range(2)]
    for tt, d in qphi[:o['w1']]: phi(acc[tt][d], pq[tt].sub(2*d, 2))
    stamp(P, 4)
    lg = lab("gat")
    P(f"""s_mov_b32 {sRetry}, 0
    v_readfirstlane_b32 {sT}, {pr[0]}
    s_cmp_lt_u32 {sT}, 32
    s_cbranch_scc1 {lg}_slow
    {lg}:""")
    OOL(f"{lg}_slow:\ns_mov_b64 exec, 1")
    poll_cnt(OOL, vC1, pr, 32, o['sl1'], f"{lg}_ok")
    OOL(f"{lg}_ok:\ns_mov_b64 exec, -1\ns_branch {lg}")
    stamp(P, 5)
    P(f"""s_add_u32 {sRetry}, {sRetry}, 1
    s_cmp_lt_u32 {sRetry}, {SPIN_G}
    s_cselect_b64 {sEx}, -1, 0""")
    for i in range(2): P(f"buffer_load_dwordx4 {zl[i]}, {vZL}, {srdWS}, 0 offen offset:{1024*i} sc1")
    for p in range(16):
        if p % 2 == 0: P(f"s_add_u32 {sBase}, {sGr}, {p*1024}\ns_and_b32 {sBase}, {sBase}, 0x3fff")
        P(f"buffer_load_dwordx4 {parts[p]}, {vPA}, {srdWS}, {sBase} offen offset:{(p%2)*1024} sc1")
    for tt, d in qphi[o['w1']:]: phi(acc[tt][d], pq[tt].sub(2*d, 2))
    for d in range(4):
        P(f"""v_lshlrev_b32 {zs[2*d]}, 16, {zl[0][d]}
        v_and_b32 {zs[2*d+1]}, 0xffff0000, {zl[0][d]}
        v_lshlrev_b32 {tmp[0]}, 16, {zl[1][d]}
        v_and_b32 {tmp[1]}, 0xffff0000, {zl[1][d]}
        v_add_f32 {zs[2*d]}, {zs[2*d]}, {tmp[0]}
        v_add_f32 {zs[2*d+1]}, {zs[2*d+1]}, {tmp[1]}""")
    for sh in (8, 4, 2, 1):
        for j in range(8): P(f"v_add_f32_dpp {zs[j]}, {zs[j]}, {zs[j]} row_ror:{sh} row_mask:0xf bank_mask:0xf")
    for d in range(4): P(f"v_cvt_pk_bf16_f32 {zb[d]}, {zs[2*d]}, {zs[2*d+1]}")
    for tt in range(4): P(f"{MF} {den[tt]}, {zb}, {pq[tt]}, 0")
    for p in range(16):
        P(f"{MF} {sm[0]}, {selr.sub(2,4)}, {parts[p]}, {sm[0] if p else 0}")
        P(f"{MF} {sm[1]}, {selr.sub(0,4)}, {parts[p]}, {sm[1] if p else 0}")
        if p == 4:
            for tt in range(4): P(f"v_add_f32 {den[tt][0]}, {sEps}, {den[tt][0]}")
        if p == 5:
            for tt in range(4): P(f"v_rcp_f32 {den[tt][1]}, {den[tt][0]}")
    P(f"""v_cmp_u_f32 vcc, {sm[0][0]}, {den[0][0]}
    v_cvt_pk_bf16_f32 {pf[0]}, {sm[0][0]}, {sm[0][1]}
    v_cvt_pk_bf16_f32 {pf[1]}, {sm[0][2]}, {sm[0][3]}
    v_cvt_pk_bf16_f32 {pf[2]}, {sm[1][0]}, {sm[1][1]}
    v_cvt_pk_bf16_f32 {pf[3]}, {sm[1][2]}, {sm[1][3]}
    s_and_b64 vcc, vcc, {sEx}
    s_cbranch_scc1 {lg}""")
    P(f"""ds_write_b128 {vS3W}, {pf}
    ds_write_b32 {vS3FW}, {vOne}""")
    lds_pair_wait(vS3FR, kf[0], kf[1], vS3R, 2048)
    num = [[R('v', F0 + 8*tt + 4*e, 4) for e in range(2)] for tt in range(4)]
    for tt in range(4):
        for e in range(2): P(f"{MF} {num[tt][e]}, {kf[e]}, {pq[tt]}, 0")
    for tt in range(4):
        for e in range(2):
            for j in range(4): P(f"v_mul_f32 {num[tt][e][j]}, {num[tt][e][j]}, {den[tt][1]}")
        of = pq[tt]
        for e in range(2):
            P(f"v_cvt_pk_bf16_f32 {of[2*e]}, {num[tt][e][0]}, {num[tt][e][1]}\nv_cvt_pk_bf16_f32 {of[2*e+1]}, {num[tt][e][2]}, {num[tt][e][3]}")
        P(f"s_mov_b32 {sBase}, {tt*32768}\nbuffer_store_dwordx4 {of}, {vOA}, {srdWS}, {sBase} offen sc1")
    stamp(P, 6)
    P(f"ds_write_b32 {vS1W}, {vOne} offset:{GATE - S1F}")
    for ctl in ("row_shr:1 row_mask:0xf", "row_shr:2 row_mask:0xf", "row_shr:4 row_mask:0xf", "row_shr:8 row_mask:0xf", "row_bcast:15 row_mask:0xa"):
        P(f"v_add_f32_dpp {vGa}, {vGa}, {vGa} {ctl} bank_mask:0xf")
    bf16r(P, vGa, vGa)
    P(f"v_mul_f32 {vGa}, {LOG2E ^ 0x80000000}, {vGa}\nv_exp_f32 {vGa}, {vGa}\nv_add_f32 {vGa}, 1.0, {vGa}\nv_rcp_f32 {vGa}, {vGa}")
    bf16r(P, vGa, vGa)
    V.reset(cmark)
    gv = V(2); om = V(2); lf = V(4)
    wf = [[V(4) for _ in range(4)] for _ in range(2)]
    cc = [[V(4) for _ in range(4)] for _ in range(2)]
    ga = [[V(4) for _ in range(4)] for _ in range(2)]
    RING = o['ring']
    ring = [V(4) for _ in range(RING)]
    def wait_lf(level):
        l0, l1 = lab("lf"), lab("lfd")
        P(f"s_mov_b32 {sCnt}, 0")
        P.loop_begin(l0)
        P(f"""ds_read_b128 {lf}, {vLFa}
        s_add_u32 {sCnt}, {sCnt}, 1
        s_cmp_gt_u32 {sCnt}, {SPIN_L}
        s_waitcnt lgkmcnt(0)
        s_cbranch_scc1 {l1}
        v_min_u32 {lf[0]}, {lf[0]}, {lf[1]}
        v_min3_u32 {lf[0]}, {lf[0]}, {lf[2]}, {lf[3]}
        v_cmp_gt_u32 vcc, {level}, {lf[0]}
        s_cbranch_vccnz {l0}""")
        P.loop_end()
        P(f"{l1}:")
    def check_lf(level):
        l0 = lab("clf")
        P(f"""v_min_u32 {lf[0]}, {lf[0]}, {lf[1]}
        v_min3_u32 {lf[0]}, {lf[0]}, {lf[2]}, {lf[3]}
        v_cmp_gt_u32 vcc, {level}, {lf[0]}
        s_cbranch_vccnz {l0}_slow
        {l0}_back:""")
        OOL(f"{l0}_slow:\ns_mov_b32 {sCnt}, 0")
        OOL.loop_begin(f"{l0}_spin")
        OOL(f"""ds_read_b128 {lf}, {vLFa}
        s_add_u32 {sCnt}, {sCnt}, 1
        s_cmp_gt_u32 {sCnt}, {SPIN_L}
        s_waitcnt lgkmcnt(0)
        s_cbranch_scc1 {l0}_back
        v_min_u32 {lf[0]}, {lf[0]}, {lf[1]}
        v_min3_u32 {lf[0]}, {lf[0]}, {lf[2]}, {lf[3]}
        v_cmp_gt_u32 vcc, {level}, {lf[0]}
        s_cbranch_vccnz {l0}_spin""")
        OOL.loop_end()
        OOL(f"s_branch {l0}_back")
    def wreads(ks):
        j, hh = ks >> 1, ks & 1
        return [L(f"ds_read_b64_tr_b16 {wf[ks&1][c].sub(2*t,2)}, {vWB[c]} offset:{wo_addr(j) - wo_base(j) + hh*4096 + t*2048}") for c in range(4) for t in range(2)]
    wait_lf(1)
    KL2 = max(1, min(21, 2*(o['n14'] + o['n15']) - 1))
    for g in wreads(0): P.extend(g)
    P(f"""s_waitcnt vmcnt(0)
    s_mov_b64 exec, 0xffff
    buffer_atomic_add {vOne}, {vA2}, {srdWS}, 0 offen sc1
    s_mov_b64 exec, {sExG}
    buffer_store_dword {vGa}, {vGS}, {srdWS}, 0 offen sc1
    s_mov_b64 exec, 1""")
    stamp(P, 7)
    poll_cnt(P, vC2, pr, 32, o['sl2'], "L_c2d")
    P("L_c2d:\ns_mov_b64 exec, -1")
    stamp(P, 8)
    def oload(j):
        ks, tt = j >> 1, j & 1
        pre = ""
        if ks % 4 == 0:
            pre = (f"s_add_u32 {sO[0]}, {sRot}, {ks*1024}\ns_and_b32 {sO[0]}, {sO[0]}, 0x7fff\n" if tt == 0 else f"s_add_u32 {sO[1]}, {sO[0]}, 32768\n")
        return L(pre + f"buffer_load_dwordx4 {ring[j % RING]}, {vOL}, {srdWS}, {sO[tt]} offen offset:{(ks&3)*1024} {o.get('oflags', 'sc1')}")
    for j in range(RING): P.extend(oload(j))
    af = [[pq[2*tt + (c >> 1)].sub(2*(c & 1), 2) for c in range(4)] for tt in range(2)]
    gaw = []
    for tt in range(2):
        gaw += [[x] for x in L(f"v_sub_f32 {om[tt]}, 1.0, {gv[tt]}\nv_cvt_pk_bf16_f32 {om[tt]}, {om[tt]}, {om[tt]}\nv_lshlrev_b32 {om[tt]}, 16, {om[tt]}")]
        for c in range(4):
            t = ga[tt][c]; a2 = af[tt][c]
            gaw += [[x] for x in L(f"""v_lshlrev_b32 {t[0]}, 16, {a2[0]}
            v_and_b32 {t[1]}, 0xffff0000, {a2[0]}
            v_lshlrev_b32 {t[2]}, 16, {a2[1]}
            v_and_b32 {t[3]}, 0xffff0000, {a2[1]}""" + "".join(f"\nv_mul_f32 {t[j]}, {gv[tt]}, {t[j]}" for j in range(4)))]
    KA = o.get('ka', 24)
    for ks in range(32):
        m = [L(f"{MF} {cc[tt][c]}, {wf[ks&1][c]}, {ring[(2*ks+tt) % RING]}, {cc[tt][c] if ks else 0}") for tt in range(2) for c in range(4)]
        if ks < 31 and wo_base((ks+1) >> 1) != wo_base(ks >> 1):
            for r in vWB: P(f"v_add_u32 {r}, {(wo_base((ks+1) >> 1) - wo_base(ks >> 1)) & 0xffffffff}, {r}")
        gld = f"buffer_load_dword {gv[0]}, {vGA}, {srdWS}, 0 offen sc1\nbuffer_load_dword {gv[1]}, {vGA}, {srdWS}, 0 offen offset:64 sc1"
        if ks == 12: P(gld)
        if ks == KA:
            lgv = lab("gv")
            P(f"v_max_u32 {vT}, {gv[0]}, {gv[1]}\nv_cmp_eq_u32 vcc, -1, {vT}\ns_cbranch_vccnz {lgv}_slow\n{lgv}:")
            OOL(f"{lgv}_slow:\ns_mov_b32 {sCnt}, 0")
            OOL.loop_begin(f"{lgv}_spin")
            OOL(f"""{gld}
            s_add_u32 {sCnt}, {sCnt}, 1
            s_cmp_gt_u32 {sCnt}, {SPIN_G}
            s_waitcnt vmcnt(0)
            s_cbranch_scc1 {lgv}
            v_max_u32 {vT}, {gv[0]}, {gv[1]}
            v_cmp_eq_u32 vcc, -1, {vT}
            s_cbranch_vccnz {lgv}_spin""")
            OOL.loop_end()
            OOL(f"s_branch {lgv}")
        if ks in (KL2 - 1, KA - 1): P(f"ds_read_b128 {lf}, {vLFa}")
        if ks == KL2: check_lf(2)
        if ks == KA:
            check_lf(3)
            for tt in range(2):
                for c in range(4): P(f"ds_read_b64_tr_b16 {af[tt][c]}, {vAR[tt]} offset:{c*USZ}")
        rd = wreads(ks + 1) if ks < 31 else []
        if o.get('cnomf'):
            rd = []; m = [x if i % 4 == 0 else [] for i, x in enumerate(m)]
        ex = []
        if ks > KA:
            n = -(-len(gaw) // (32 - ks)); ex = gaw[:n]; del gaw[:n]
        for half in range(2):
            f_ = rd[4*half:4*half+4] + ex[half*((len(ex)+1)//2):(half+1)*((len(ex)+1)//2)]
            P.extend(merge(m[4*half:4*half+4], f_))
            if 2*ks + half + RING < 64 and not o.get('cnold'): P.extend(oload(2*ks + half + RING))
    stamp(P, 9)
    for tt in range(2):
        for cp in range(2):
            d = ring[2*tt + cp]
            for q in range(2):
                c = 2*cp + q; t = ga[tt][c]
                for j in range(4): P(f"v_fmac_f32 {t[j]}, {om[tt]}, {cc[tt][c][j]}")
                P(f"v_cvt_pk_bf16_f32 {d[2*q]}, {t[0]}, {t[1]}\nv_cvt_pk_bf16_f32 {d[2*q+1]}, {t[2]}, {t[3]}")
            P(f"""s_mov_b32 {sBase}, {tt*32768}
            v_permlane16_swap_b32 {d[0]}, {d[2]}
            v_permlane16_swap_b32 {d[1]}, {d[3]}
            buffer_store_dwordx4 {d}, {vOut}, {srdOUT}, {sBase} offen offset:{64*cp} {o.get("outflags","")}""")
    stamp(P, 10)
    if stamps:
        P("s_waitcnt vmcnt(0)"); stamp(P, 11)
    dump_stamps(P, vT, lf, 0)
    P("L_end:\ns_endpgm")
    OOL("L_codeend:")
    compute, vhiC, shiC = P, V.hi, S.hi

    hdr = open("gated_mix__ssm_conv_s4d__linear_attn_block__prompt.s.ref").read().split("; Override")[0] if o.get('hdr') else ""
    out = [hdr + "; @launch grid=(256,1,1) block=(512,1,1) lds=163840",
           '.amdgcn_target "amdgcn-amd-amdhsa--gfx950"', ".text", f".globl {KNAME}", ".p2align 8", f".type {KNAME},@function", f"{KNAME}:"]
    out += E.finalize() + loader.finalize() + compute.finalize() + OOL.finalize()
    out += ['.section .rodata,"a"', kernel_desc(KNAME, 256, 0, 102)]
    info = dict(vL=vhiL, vC=vhiC, sL=shiL, sC=shiC, nside=len(side))
    return "\n".join(out), info

if __name__ == "__main__":
    opts = dict(hdr=True); opts.update(eval(sys.argv[2]) if len(sys.argv) > 2 else {})
    txt, info = gen(stamps=opts.get('stamps', False), opts=opts)
    open(sys.argv[1], "w").write(txt)
    print(info)
```
